```python
import torch

def _softmax(x, axis=-1):
    return torch.softmax(x, dim=axis)
def _gelu(x):
    return torch.nn.functional.gelu(x, approximate="tanh")
def _silu(x):
    return torch.nn.functional.silu(x)
def _sigmoid(x):
    return torch.sigmoid(x)
def _layernorm(x, axis=-1, eps=1e-5):
    m = x.mean(dim=axis, keepdim=True)
    v = x.var(dim=axis, keepdim=True, unbiased=False)
    return (x - m) / torch.sqrt(v + eps)
def _scatter_add(tgt, idx, src, axis=0):
    return tgt.clone().index_add_(axis, idx, src)
def _segment_sum(src, seg, n):
    out = torch.zeros((n,) + src.shape[1:], dtype=src.dtype)
    return out.index_add_(0, seg, src)
def _pad(x, pw):
    flat = tuple(v for pair in reversed(pw) for v in pair)
    return torch.nn.functional.pad(x, flat)

kernel_name = 'parallel_sum__compressed_kv_cla__glu_gated_reglu__prompt'

def setup_inputs():

    _w = (lambda a: (lambda t: t.to(torch.bfloat16) if t.is_floating_point() else t)(torch.as_tensor(a)))
    def _A_setup():
        B, H, Sq, Sk, D, M = 1, 32, 2048, 2048, 128, 640
        Dc = 4 * D
        return {
            "x": _w((lambda *s: torch.randn(*s, dtype=torch.bfloat16) * 0.05)(B, Sq, M)),
            "c_kv": _w((lambda *s: torch.randn(*s, dtype=torch.bfloat16) * 0.4)(B, Sk, Dc)),
            "w_q": _w((lambda *s: torch.randn(*s, dtype=torch.bfloat16) * 1.6)(M, H, D) * (M ** -0.5)),
            "w_uk": _w((lambda *s: torch.randn(*s, dtype=torch.bfloat16) * 1.6)(Dc, H, D) * (Dc ** -0.5)),
            "w_uv": _w((lambda *s: torch.randn(*s, dtype=torch.bfloat16) * 0.4)(Dc, H, D) * (Dc ** -0.5)),
            "w_o": _w((lambda *s: torch.randn(*s, dtype=torch.bfloat16) * 0.4)(H, D, M) * ((H * D) ** -0.5)),
        }
    _A_in = _A_setup()

    def _B_setup():
        B, S, D, F = 1, 2048, 640, 1728
        return {
            "x": _w((lambda *s: torch.randn(*s, dtype=torch.bfloat16) * 0.05)(B, S, D)),
            "W_gate": _w((lambda *s: torch.randn(*s, dtype=torch.bfloat16) * 0.2)(D, F) * (2.0 / D) ** 0.5),
            "W_up": _w((lambda *s: torch.randn(*s, dtype=torch.bfloat16) * 0.2)(D, F) * (2.0 / D) ** 0.5),
            "W_down": _w((lambda *s: torch.randn(*s, dtype=torch.bfloat16) * 0.2)(F, D) * (1.0 / F) ** 0.5),
        }
    _B_in = _B_setup()

    return {
        "A_x": _A_in["x"],
        "A_c_kv": _A_in["c_kv"],
        "A_w_q": _A_in["w_q"],
        "A_w_uk": _A_in["w_uk"],
        "A_w_uv": _A_in["w_uv"],
        "A_w_o": _A_in["w_o"],
        "B_x": _B_in["x"],
        "B_W_gate": _B_in["W_gate"],
        "B_W_up": _B_in["W_up"],
        "B_W_down": _B_in["W_down"],
    }

def reference(A_x, A_c_kv, A_w_q, A_w_uk, A_w_uv, A_w_o, B_x, B_W_gate, B_W_up, B_W_down):
    def _A_ref(x, c_kv, w_q, w_uk, w_uv, w_o):
        B, Sq, M = x.shape[0], x.shape[1], x.shape[2]
        Sk = c_kv.shape[1]
        H, D = w_q.shape[1], w_q.shape[2]
        q = torch.einsum("bqm,mhd->bhqd", x, w_q)
        k = torch.einsum("bkc,chd->bhkd", c_kv, w_uk)
        v = torch.einsum("bkc,chd->bhkd", c_kv, w_uv)
        scores = torch.einsum("bhqd,bhkd->bhqk", q, k) * (D ** -0.5)
        off = Sk - Sq
        qi = torch.arange(Sq)[:, None]
        kj = torch.arange(Sk)[None, :]
        cmask = kj <= (qi + off)
        scores = torch.where(cmask[None, None], scores, -1e9)
        p = _softmax(scores, axis=-1)
        ctx = torch.einsum("bhqk,bhkd->bhqd", p, v)
        return torch.einsum("bhqd,hdm->bqm", ctx, w_o)

    def _B_ref(x, W_gate, W_up, W_down):
        gate = torch.einsum("bsd,df->bsf", x, W_gate)
        up = torch.einsum("bsd,df->bsf", x, W_up)
        gate = gate * (lambda x, dt: x.to(dt))(gate > 0, gate.dtype)
        h = gate * up
        return torch.einsum("bsf,fd->bsd", h, W_down)

    x = A_x
    xn = _layernorm(x, axis=-1)
    return x + _A_ref(xn, A_c_kv, A_w_q, A_w_uk, A_w_uv, A_w_o) + _B_ref(xn, B_W_gate, B_W_up, B_W_down)
```

```python
import re

def regs_of(tok):
    tok = tok.strip()
    neg = tok.startswith('-')
    if neg: tok = tok[1:]
    if tok.startswith('abs(') : tok = tok[4:-1]
    if tok.startswith('|'): tok = tok.strip('|')
    m = re.fullmatch(r'([vsa])\[(\d+):(\d+)\]', tok)
    if m:
        return [(m.group(1), i) for i in range(int(m.group(2)), int(m.group(3)) + 1)]
    m = re.fullmatch(r'([vsa])(\d+)', tok)
    if m:
        return [(m.group(1), int(m.group(2)))]
    if tok == 'vcc': return [('s', 'vcc')]
    if tok == 'm0': return [('s', 'm0')]
    if tok == 'exec': return [('s', 'exec')]
    return []

TRANS = ('v_exp_f32', 'v_log_f32', 'v_rcp_f32', 'v_rsq_f32', 'v_sqrt_f32')

class Ins:
    def __init__(self, text):
        self.text = text
        body = text.split(';')[0].strip()
        parts = body.split(None, 1)
        self.op = parts[0]
        ops = []
        if len(parts) > 1:
            ops = [o.strip() for o in re.split(r',(?![^\[]*\])', parts[1])]
            if ops:
                last = ops[-1].split()
                self.mods = last[1:]
                ops[-1] = last[0] if last else ''
        else:
            self.mods = []
        self.ops = ops
        op = self.op
        self.mfma = op.startswith('v_mfma')
        self.valu = op.startswith('v_') and not self.mfma
        self.trans = op.startswith(TRANS)
        self.ds = op.startswith('ds_')
        self.vmem = op.startswith(('buffer_', 'global_'))
        self.salu = op.startswith('s_')
        self.dpp = '_dpp' in op or any(m.startswith(('row_', 'quad_perm')) for m in self.mods)
        self.dst = []; self.src = []; self.srcC = []
        R = [regs_of(o) for o in ops]
        if self.mfma:
            self.dst = R[0]; self.src = R[1] + R[2] + R[3]; self.srcC = R[3]; self.srcAB = R[1] + R[2]
            self.passes = 8 if '32x32x16' in op else 4
        elif self.valu:
            if op.startswith('v_cmp'):
                self.dst = R[0]; self.src = sum(R[1:], [])
            elif op.startswith('v_permlane') and 'swap' in op:
                self.dst = R[0] + R[1]; self.src = R[0] + R[1]
            elif op.startswith(('v_fmac',)):
                self.dst = R[0]; self.src = sum(R, [])
            else:
                self.dst = R[0]; self.src = sum(R[1:], [])
        elif self.ds:
            if op.startswith('ds_read') or op.startswith('ds_swizzle') or op.startswith('ds_bpermute'):
                self.dst = R[0]; self.src = sum(R[1:], [])
            else:
                self.src = sum(R, [])
        elif self.vmem:
            lds = 'lds' in self.mods
            if 'load' in op and not lds:
                self.dst = R[0]; self.src = sum(R[1:], [])
            else:
                self.src = sum(R, [])
            self.lds = lds
            self.wide_store = ('store' in op and ('x4' in op or 'x3' in op))
            self.data = R[0] if 'store' in op and op.startswith('buffer_') else []
        elif self.salu:
            if op.startswith(('s_cmp', 's_cbranch', 's_branch', 's_waitcnt', 's_barrier', 's_nop', 's_endpgm', 's_setprio')):
                self.src = sum(R, [])
            else:
                self.dst = R[0] if R else []; self.src = sum(R[1:], [])
        self.states = 1
        if op == 's_nop':
            self.states = int(ops[0], 0) + 1

class Asm:
    def __init__(self):
        self.lines = []
    def __call__(self, text):
        for l in text.split('\n'):
            l = l.strip()
            if l: self.lines.append(l)
    def label(self, name):
        self.lines.append(name + ':')
    def raw(self, text):
        self.lines.append(text)
    def text(self):
        out = []
        for l in self.lines:
            if l.endswith(':') or l.startswith('.') or l.startswith(';'):
                out.append(l)
            else:
                out.append('    ' + l)
        return '\n'.join(out) + '\n'

def check_hazards(lines):
    ins = []
    for l in lines:
        if l.endswith(':') or l.startswith('.') or l.startswith(';'): continue
        ins.append(Ins(l))
    probs = []
    n = len(ins)
    for i, p in enumerate(ins):
        if p.op == 's_endpgm': continue
        dist = 0
        for j in range(i + 1, min(n, i + 24)):
            c = ins[j]
            if c.op == 's_endpgm': break
            need = 0; why = ''
            pd = set(p.dst)
            if p.mfma:
                lim = 12 if p.passes == 8 else 8
                if c.mfma:
                    if pd & set(c.srcAB): need, why = lim, 'mfma D->mfma AB'
                    elif pd & set(c.srcC):
                        if not (c.srcC == p.dst and c.passes == p.passes): need, why = (10 if p.passes == 8 else 6), 'mfma D->mfma C overlap'
                    if pd & set(c.dst) and not (c.srcC == p.dst): need, why = max(need, lim), 'mfma WAW'
                elif c.valu or c.ds or c.vmem:
                    if pd & (set(c.src) | set(c.dst)): need, why = lim, 'mfma D->valu/mem'
                    if c.valu and set(p.srcC) & set(c.dst):
                        w = 7 if p.passes == 8 else 3
                        if w > need: need, why = w, 'mfma C WAR'
            elif p.valu:
                vd = {r for r in pd if r[0] in 'va'}
                sd = {r for r in pd if r[0] == 's'}
                if c.mfma and vd & set(c.src): need, why = 2, 'valu->mfma'
                if p.trans and c.valu and not c.trans and vd & set(c.src): need, why = max(need, 1), 'trans->valu'
                if c.valu and c.op.startswith('v_permlane') and vd & set(c.src): need, why = 2, 'valu->permlane'
                if c.valu and c.dpp and vd & set(c.src): need, why = 2, 'valu->dpp'
                if c.valu and c.op.startswith(('v_readfirstlane', 'v_readlane')) and vd & set(c.src): need, why = max(need, 1), 'valu->readlane'
                if sd:
                    if c.valu and sd & set(c.src): need, why = max(need, 2), 'valu sgpr->valu'
                    if c.vmem and sd & set(c.src): need, why = max(need, 5), 'valu sgpr->vmem'
            elif p.vmem and getattr(p, 'wide_store', False):
                if set(p.data) & set(c.dst): need, why = 2, 'store data WAR'
            elif p.salu:
                if ('s', 'm0') in pd and c.vmem and getattr(c, 'lds', False): need, why = 1, 'm0->dma'
            if need > dist:
                probs.append(f'HAZARD {why}: need {need} have {dist}:\n   {p.text}\n   {c.text}')
            dist += c.states
            if dist >= 12: break
    return probs
```

```python
from asmlib import *

WS_XN = 0
WS_KF = 0x400000
WS_VF = 0x1400000
WS_A3 = 0x2400000
WS_W3 = 0x3C00000
NKS = 182
A3_MT = NKS * 1024

ACC = 0
XF = [128, 152]
WF = [144, 168]
XA = 176
WA = 180
DX = 182
DW = 186
VL = 190
VT = 191
S_XS = 8
S_WS = 12
S_XOFF, S_WOFF, S_WSTEP, S_M0X, S_M0W = 16, 17, 18, 19, 20
S_WAVE, S_HEAD, S_MT = 21, 22, 23

def srd(a, d, lo, hi, size):
    a(f's_mov_b32 s{d}, s{lo}')
    a(f's_and_b32 s{d+1}, s{hi}, 0xffff')
    a(f's_mov_b32 s{d+2}, {size}')
    a(f's_mov_b32 s{d+3}, 0x20000')

def srd_off(a, d, lo, hi, off, size):
    a(f's_add_u32 s{d}, s{lo}, {off}')
    a(f's_addc_u32 s{d+1}, s{hi}, 0')
    a(f's_and_b32 s{d+1}, s{d+1}, 0xffff')
    a(f's_mov_b32 s{d+2}, {size}')
    a(f's_mov_b32 s{d+3}, 0x20000')

def csel(a, d, x, y):
    a(f's_mov_b32 {d}, {y}')
    a(f's_cselect_b32 {d}, {x}, {d}')

def common_ids(a, done):
    a('s_cmp_ge_u32 s2, 256')
    a(f's_cbranch_scc1 {done}')
    a(f'v_and_b32 v{VL}, 63, v0')
    a(f'v_lshrrev_b32 v{VT}, 6, v0')
    a('s_nop 0')
    a(f'v_readfirstlane_b32 s{S_WAVE}, v{VT}')
    a('s_and_b32 s3, s2, 7')
    a('s_lshr_b32 s4, s2, 3')
    a(f's_and_b32 s{S_HEAD}, s4, 3')
    a('s_lshl_b32 s3, s3, 2')
    a(f's_add_u32 s{S_HEAD}, s{S_HEAD}, s3')
    a(f's_lshr_b32 s{S_MT}, s4, 2')

def gemm_lds_addrs(a, pi_rows):
    t = VT
    a(f'v_and_b32 v{t}, 31, v{VL}')
    if pi_rows:
        a(f'v_and_b32 v{t+1}, 0x13, v{t}')
        a(f'v_bfe_u32 v{t+2}, v{t}, 2, 1')
        a(f'v_lshl_or_b32 v{t+1}, v{t+2}, 3, v{t+1}')
        a(f'v_bfe_u32 v{t+2}, v{t}, 3, 1')
        a(f'v_lshl_or_b32 v{t}, v{t+2}, 2, v{t+1}')
    a(f'v_bfe_u32 v{t+1}, v{t}, 1, 3')
    a(f'v_lshrrev_b32 v{t+2}, 5, v{VL}')
    a(f'v_xor_b32 v{t+1}, v{t+1}, v{t+2}')
    a(f'v_lshlrev_b32 v{t+1}, 4, v{t+1}')
    a(f'v_lshl_or_b32 v{t+1}, v{t}, 7, v{t+1}')
    a(f's_lshr_b32 s3, s{S_WAVE}, 2')
    a('s_lshl_b32 s3, s3, 14')
    a(f'v_add_u32 v{XA}, s3, v{t+1}')
    for s in range(1, 4):
        a(f'v_xor_b32 v{XA+s}, {s*32}, v{XA}')
    a(f'v_bfe_u32 v{t}, v{VL}, 2, 2')
    a(f'v_lshl_add_u32 v{t+1}, v{t+2}, 3, v{t}')
    a(f'v_lshlrev_b32 v{t+4}, 7, v{t+1}')
    a(f'v_bfe_u32 v{t+1}, v{VL}, 4, 1')
    a(f'v_lshl_or_b32 v{t+4}, v{t+1}, 5, v{t+4}')
    a(f'v_and_b32 v{t+1}, 1, v{VL}')
    a(f'v_lshl_or_b32 v{t+4}, v{t+1}, 4, v{t+4}')
    a(f'v_bfe_u32 v{t+1}, v{VL}, 1, 1')
    a(f'v_lshl_or_b32 v{t+4}, v{t+1}, 3, v{t+4}')
    a(f'v_bfe_u32 v{t+1}, v{VL}, 3, 1')
    a(f'v_lshl_or_b32 v{t+4}, v{t+1}, 6, v{t+4}')

def gemm_dma_voffs(a, xstride, s_rowbase, s_wstride, s_wcol):
    t = VT
    a(f'v_lshrrev_b32 v{t}, 3, v{VL}')
    a(f'v_and_b32 v{t+1}, 7, v{VL}')
    a(f'v_lshrrev_b32 v{t+2}, 4, v{VL}')
    a(f'v_xor_b32 v{t+2}, v{t+1}, v{t+2}')
    a(f'v_add_u32 v{t+3}, {s_rowbase}, v{t}')
    a(f's_mov_b32 s3, {xstride}')
    a(f'v_mul_lo_u32 v{t+3}, v{t+3}, s3')
    for i in range(4):
        if i & 1:
            a(f'v_xor_b32 v{t+5}, 4, v{t+2}')
            a(f'v_lshl_add_u32 v{DX+i}, v{t+5}, 4, v{t+3}')
        else:
            a(f'v_lshl_add_u32 v{DX+i}, v{t+2}, 4, v{t+3}')
        if i:
            a(f'v_add_u32 v{DX+i}, {i*(8*xstride-1024)}, v{DX+i}')
    a(f'v_bfe_u32 v{t+2}, v{VL}, 4, 1')
    a(f'v_lshlrev_b32 v{t+2}, 2, v{t+2}')
    a(f'v_xor_b32 v{t+2}, v{t+1}, v{t+2}')
    a(f's_and_b32 s3, s{S_WAVE}, 1')
    a('s_lshl_b32 s3, s3, 5')
    a(f'v_add_u32 v{t+3}, s3, v{t}')
    a(f'v_mul_lo_u32 v{t+3}, v{t+3}, {s_wstride}')
    a(f'v_lshl_add_u32 v{t+3}, v{t+2}, 4, v{t+3}')
    a(f'v_add_u32 v{DW}, {s_wcol}, v{t+3}')
    a(f's_lshl_b32 s3, {s_wstride}, 3')
    a('s_sub_u32 s3, s3, 1024')
    for i in range(1, 4):
        a(f'v_add_u32 v{DW+i}, s3, v{DW+i-1}')
    a(f's_lshl_b32 s{S_WSTEP}, {s_wstride}, 6')
    a(f's_lshl_b32 s{S_M0X}, s{S_WAVE}, 12')
    a(f's_add_u32 s{S_M0W}, s{S_M0X}, 0x10000')
    a(f's_mov_b32 s{S_XOFF}, 0')
    a(f's_mov_b32 s{S_WOFF}, 0')

def gemm_dma(buf):
    L = []
    L.append(f's_add_u32 m0, s{S_M0X}, {buf*32768}')
    L.append('s_nop 0')
    for i in range(4):
        L.append(f'buffer_load_dwordx4 v{DX+i}, s[{S_XS}:{S_XS+3}], s{S_XOFF} offen offset:{i*1024} lds')
    L.append(f's_add_u32 m0, s{S_M0W}, {buf*32768}')
    L.append(f's_add_u32 s{S_XOFF}, s{S_XOFF}, 128')
    for i in range(4):
        L.append(f'buffer_load_dwordx4 v{DW+i}, s[{S_WS}:{S_WS+3}], s{S_WOFF} offen offset:{i*1024} lds')
    L.append(f's_add_u32 s{S_WOFF}, s{S_WOFF}, s{S_WSTEP}')
    return L

def gemm_reads(buf, s, f):
    L = []
    for ct in range(2):
        for u in range(2):
            L.append(f'ds_read_b64_tr_b16 v[{WF[f]+ct*4+u*2}:{WF[f]+ct*4+u*2+1}], v{WA+ct} offset:{buf*32768+(16*s+4*u)*128}')
    for rt in range(4):
        L.append(f'ds_read_b128 v[{XF[f]+rt*4}:{XF[f]+rt*4+3}], v{XA+s} offset:{buf*32768+rt*4096}')
    return [L[0], L[1], L[4], L[5], L[2], L[3], L[6], L[7]]

def gemm_mfmas(f, swap, first):
    L = []
    for rt, ct in [(0,0),(1,0),(0,1),(1,1),(2,0),(2,1),(3,0),(3,1)]:
        d = ACC + (rt*2+ct)*16
        x = f'v[{XF[f]+rt*4}:{XF[f]+rt*4+3}]'; w = f'v[{WF[f]+ct*4}:{WF[f]+ct*4+3}]'
        A, B = (x, w) if swap else (w, x)
        c = '0' if first else f'v[{d}:{d+15}]'
        L.append(f'v_mfma_f32_32x32x16_bf16 v[{d}:{d+15}], {A}, {B}, {c}')
    return L

def interleave(a, mf, fill):
    n = len(mf); k = 0
    for i, m in enumerate(mf):
        a(m)
        upto = (len(fill) * (i + 1) + n - 1) // n
        while k < upto:
            a(fill[k]); k += 1

def gemm_main(a, nst, swap):
    for r in gemm_reads(0, 0, 0): a(r)
    for t in range(nst):
        buf = t & 1
        for s in range(4):
            f = s & 1
            if s < 3:
                a('s_waitcnt lgkmcnt(0)')
                interleave(a, gemm_mfmas(f, swap, t == 0 and s == 0), gemm_reads(buf, s + 1, f ^ 1))
            else:
                if t + 1 < nst:
                    a('s_waitcnt vmcnt(0) lgkmcnt(0)')
                    a('s_barrier')
                    fill = gemm_reads(buf ^ 1, 0, f ^ 1)
                    if t + 2 < nst:
                        fill = fill + gemm_dma(buf)
                    interleave(a, gemm_mfmas(f, swap, False), fill)
                else:
                    a('s_waitcnt lgkmcnt(0)')
                    interleave(a, gemm_mfmas(f, swap, False), [])

def wave_sum(a, v, t):
    for r in (8, 4, 2, 1):
        a('s_nop 1')
        a(f'v_add_f32_dpp v{v}, v{v}, v{v} row_ror:{r} row_mask:0xf bank_mask:0xf')
    for sw in ('v_permlane16_swap_b32', 'v_permlane32_swap_b32'):
        a(f'v_mov_b32 v{t}, v{v}')
        a('s_nop 1')
        a(f'{sw} v{v}, v{t}')
        a(f'v_add_f32 v{v}, v{v}, v{t}')

def rne_bf16(a, v):
    a(f'v_cvt_pk_bf16_f32 v{v}, v{v}, v{v}')
    a(f'v_and_b32 v{v}, 0xffff0000, v{v}')

def k1(a):
    a.raw('.p2align 8'); a.raw('.globl k1_kernel'); a.raw('.type k1_kernel,@function')
    a.label('k1_kernel')
    common_ids(a, 'K1_DONE')
    a('s_load_dwordx4 s[24:27], s[0:1], 0')
    a('s_load_dwordx4 s[28:31], s[0:1], 24')
    a('s_load_dwordx2 s[32:33], s[0:1], 40')
    a('s_load_dwordx2 s[34:35], s[0:1], 72')
    a('s_load_dwordx2 s[36:37], s[0:1], 96')
    gemm_lds_addrs(a, True)
    a(f's_and_b32 s3, s{S_WAVE}, 3')
    a('s_lshl_b32 s3, s3, 13')
    a('s_add_u32 s3, s3, 0x10000')
    a(f'v_add_u32 v{WA}, s3, v{VT+4}')
    a(f'v_xor_b32 v{WA+1}, 64, v{WA}')
    a(f's_lshl_b32 s5, s{S_MT}, 8')
    a(f's_lshl_b32 s6, s{S_WAVE}, 5')
    a('s_add_u32 s5, s5, s6')
    a('s_mov_b32 s6, 8192')
    a(f's_bfe_u32 s7, s{S_WAVE}, 0x10001')
    a('s_lshl_b32 s7, s7, 7')
    a(f's_lshl_b32 s38, s{S_HEAD}, 8')
    a('s_add_u32 s7, s7, s38')
    gemm_dma_voffs(a, 1024, 's5', 's6', 's7')
    a('s_waitcnt lgkmcnt(0)')
    srd(a, S_XS, 26, 27, 2048*1024)
    a(f's_cmp_lt_u32 s{S_WAVE}, 4')
    a('s_cselect_b32 s38, s28, s30')
    a('s_cselect_b32 s39, s29, s31')
    srd(a, S_WS, 38, 39, 512*8192)
    for l in gemm_dma(0): a(l)
    gw = 40
    a('s_lshl_b32 s40, s2, 3')
    a(f's_add_u32 s40, s40, s{S_WAVE}')
    srd(a, 44, 24, 25, 2048*1280)
    a('s_mul_i32 s41, s40, 1280')
    a(f'v_lshlrev_b32 v200, 2, v{VL}')
    for i in range(5):
        a(f'buffer_load_dword v{201+i}, v200, s[44:47], s41 offen offset:{i*256}')
    a('s_mul_i32 s42, s40, 6554')
    a('s_lshr_b32 s42, s42, 16')
    a('s_mul_i32 s43, s42, 10')
    a('s_sub_u32 s43, s40, s43')
    a('s_cmp_lt_u32 s42, 128')
    a('s_cselect_b32 s38, s32, s34')
    a('s_cselect_b32 s39, s33, s35')
    csel(a, 's52', 4096*1280, 1728*1280)
    a('s_cselect_b32 s53, 0, 128')
    a('s_cmp_ge_u32 s40, 1820')
    a('s_cselect_b32 s52, 0, s52')
    srd(a, 48, 38, 39, 's52')
    a('s_sub_u32 s53, s42, s53')
    a(f's_mul_i32 s53, s53, {32*1280}')
    a('s_lshl_b32 s54, s43, 7')
    a('s_add_u32 s53, s53, s54')
    a(f'v_lshrrev_b32 v208, 4, v{VL}')
    a(f'v_mul_u32_u24 v209, {8*1280}, v208')
    a(f'v_and_b32 v210, 15, v{VL}')
    a('v_lshl_add_u32 v209, v210, 3, v209')
    for i in range(8):
        if i == 3 or i == 6:
            a(f'v_add_u32 v209, {3*1280}, v209')
        a(f'buffer_load_dwordx2 v[{212+2*i}:{213+2*i}], v209, s[48:51], s53 offen offset:{(i%3)*1280}')
    for l in gemm_dma(1): a(l)
    a('s_waitcnt vmcnt(16)')
    for i in range(5):
        a(f'v_lshlrev_b32 v{230+2*i}, 16, v{201+i}')
        a(f'v_and_b32 v{231+2*i}, 0xffff0000, v{201+i}')
    a('v_add_f32 v240, v230, v231')
    for i in range(2, 10): a(f'v_add_f32 v240, v240, v{230+i}')
    wave_sum(a, 240, 241)
    a(f'v_mul_f32 v240, {hex(f32(1/640))}, v240')
    a('v_sub_f32 v242, v230, v240')
    a('v_mul_f32 v243, v242, v242')
    for i in range(1, 10):
        a(f'v_sub_f32 v242, v{230+i}, v240')
        a('v_fmac_f32 v243, v242, v242')
    wave_sum(a, 243, 241)
    a(f'v_mul_f32 v243, {hex(f32(1/640))}, v243')
    rne_bf16(a, 240); rne_bf16(a, 243)
    a(f'v_add_f32 v243, {hex(f32(1e-5))}, v243')
    rne_bf16(a, 243)
    a('v_sqrt_f32 v243, v243')
    a('s_nop 0')
    rne_bf16(a, 243)
    a('v_rcp_f32 v243, v243')
    for i in range(5):
        a(f'v_sub_f32 v{230+2*i}, v{230+2*i}, v240')
        a(f'v_sub_f32 v{231+2*i}, v{231+2*i}, v240')
        a(f'v_cvt_pk_bf16_f32 v{201+i}, v{230+2*i}, v{231+2*i}')
        a(f'v_lshlrev_b32 v{230+2*i}, 16, v{201+i}')
        a(f'v_and_b32 v{231+2*i}, 0xffff0000, v{201+i}')
        a(f'v_mul_f32 v{230+2*i}, v{230+2*i}, v243')
        a(f'v_mul_f32 v{231+2*i}, v{231+2*i}, v243')
        a(f'v_cvt_pk_bf16_f32 v{201+i}, v{230+2*i}, v{231+2*i}')
    srd(a, 44, 36, 37, 2048*1280)
    for i in range(5):
        a(f'buffer_store_dword v{201+i}, v200, s[44:47], s41 offen offset:{i*256}')
    a('s_waitcnt vmcnt(13)')
    a('s_mov_b32 s54, 0x05040100')
    a('s_mov_b32 s55, 0x07060302')
    for e in range(4):
        for j in range(4):
            r0 = 212 + 2*(2*j) + (e >> 1); r1 = 212 + 2*(2*j+1) + (e >> 1)
            a(f'v_perm_b32 v{230+e*4+j}, v{r1}, v{r0}, s{54 + (e & 1)}')
    srd_off(a, 48, 36, 37, WS_W3, 40*A3_MT)
    a('s_cmp_ge_u32 s40, 1820')
    a('s_cselect_b32 s50, 0, s50')
    a(f's_mul_i32 s53, s43, {4*A3_MT}')
    a('s_lshl_b32 s42, s42, 10')
    a('s_add_u32 s53, s53, s42')
    a('v_lshrrev_b32 v209, 2, v210')
    a(f's_mov_b32 s3, {A3_MT}')
    a('v_mul_lo_u32 v209, v209, s3')
    a('v_lshl_add_u32 v209, v208, 8, v209')
    a('v_and_b32 v210, 3, v210')
    a('v_lshl_add_u32 v209, v210, 6, v209')
    for e in range(4):
        a(f'buffer_store_dwordx4 v[{230+e*4}:{233+e*4}], v209, s[48:51], s53 offen offset:{e*16}')
    a(f's_and_b32 s3, s{S_WAVE}, 2')
    a('s_cmp_eq_u32 s3, 0')
    csel(a, 's38', WS_KF, WS_VF)
    a(f's_lshl_b32 s39, s{S_HEAD}, 19')
    a('s_add_u32 s38, s38, s39')
    srd_off(a, 44, 36, 37, 's38', 512*1024)
    a('s_waitcnt vmcnt(17)')
    a('s_barrier')
    a(f's_and_b32 s3, s{S_WAVE}, 2')
    a('s_cmp_eq_u32 s3, 0')
    a('s_cbranch_scc0 K1_V')
    for isv in (0, 1):
        if isv: a.label('K1_V')
        gemm_main(a, 8, bool(isv))
        a(f'v_lshlrev_b32 v{VT}, 4, v{VL}')
        a(f's_lshr_b32 s3, s{S_WAVE}, 2')
        a(f's_lshl_b32 s4, s{S_MT}, 1')
        a('s_add_u32 s3, s3, s4')
        a('s_lshl_b32 s3, s3, 15')
        a(f's_and_b32 s4, s{S_WAVE}, 1')
        a(f's_lshl_b32 s4, s4, {11 if isv else 12}')
        a('s_add_u32 s3, s3, s4')
        a('s_nop 4')
        k = 0
        for rt in range(4):
            for ct in range(2):
                for hf in range(2):
                    src = ACC + (rt*2+ct)*16 + hf*8
                    dst = 128 + (k % 8) * 4; k += 1
                    for j in range(4):
                        a(f'v_cvt_pk_bf16_f32 v{dst+j}, v{src+2*j}, v{src+2*j+1}')
                    off = (hf*4096 + ct*1024) if isv else (ct*2 + hf)*1024
                    if off >= 4096:
                        a('s_add_u32 s4, s3, 4096'); so = 's4'; off -= 4096
                    else: so = 's3'
                    a(f'buffer_store_dwordx4 v[{dst}:{dst+3}], v{VT}, s[44:47], {so} offen offset:{off}')
            a('s_add_u32 s3, s3, 8192')
        a('s_endpgm')
    a.label('K1_DONE')
    a('s_endpgm')

import struct
def f32(x):
    return struct.unpack('<I', struct.pack('<f', x))[0]
```

```python
from gen1 import *
import math

O = 0; S = [64, 96]; NEGM = 128; Q = 144; P = 176; FR = 192
VKV, VDMA, M, L, L2, QQ, T0, VST, VLN, TMAX = 240, 241, 242, 243, 244, 245, 246, 252, 253, 254
NFR = 8
S_KS, S_VS, S_AS = 44, 48, 52
S_N, S_NA, S_NA1, S_KOFF, S_VOFF, S_G16, S_M0K, S_RET, S_THR, S_G, S_R, S_QB = 56, 57, 58, 59, 60, 61, 62, 63, 64, 65, 66, 67
S_NEGBIG = 68
QB_LDS = 131072
DIST = 6

def kread(i, slot):
    f = FR + (i % NFR) * 4
    return f'ds_read_b128 v[{f}:{f+3}], v{VKV} offset:{slot*16384 + i*1024}'
def vread(i, slot):
    f = FR + (i % NFR) * 4
    return f'ds_read_b128 v[{f}:{f+3}], v{VKV} offset:{32768 + slot*16384 + i*1024}'
def qk_mfma(i, sn):
    sub, ds = i >> 3, i & 7
    f = FR + (i % NFR) * 4
    d = sn + sub * 16
    c = f'v[{NEGM}:{NEGM+15}]' if ds == 0 else f'v[{d}:{d+15}]'
    return f'v_mfma_f32_32x32x16_bf16 v[{d}:{d+15}], v[{f}:{f+3}], v[{Q+ds*4}:{Q+ds*4+3}], {c}'
def pv_mfma(i):
    ks, dt = i >> 2, i & 3
    f = FR + (i % NFR) * 4
    d = O + dt * 16
    return f'v_mfma_f32_32x32x16_bf16 v[{d}:{d+15}], v[{f}:{f+3}], v[{P+ks*4}:{P+ks*4+3}], v[{d}:{d+15}]'

def sm_group(sc, ks):
    b = sc + ks * 8
    Ls = []
    Ls.append(f'v_exp_f32 v{b}, v{b}')
    Ls.append(f'v_exp_f32 v{b+1}, v{b+1}')
    for j in range(4):
        if j < 3:
            Ls.append(f'v_exp_f32 v{b+2*j+2}, v{b+2*j+2}')
        Ls.append(f'v_add_f32 v{L}, v{L}, v{b+2*j}')
        if j < 3:
            Ls.append(f'v_exp_f32 v{b+2*j+3}, v{b+2*j+3}')
        else:
            Ls.append(f'v_cvt_pk_bf16_f32 v{P+ks*4+2}, v{b+4}, v{b+5}')
        Ls.append(f'v_add_f32 v{L2}, v{L2}, v{b+2*j+1}')
        if j != 2:
            Ls.append(f'v_cvt_pk_bf16_f32 v{P+ks*4+j}, v{b+2*j}, v{b+2*j+1}')
    return Ls

def max_tree(sn):
    Ls = []
    t = [TMAX, T0]
    for c in range(2):
        b = sn + c * 16
        Ls.append(f'v_max3_f32 v{t[c]}, v{b}, v{b+1}, v{b+2}')
    for j in range(6):
        for c in range(2):
            b = sn + c * 16
            Ls.append(f'v_max3_f32 v{t[c]}, v{t[c]}, v{b+3+2*j}, v{b+4+2*j}')
    Ls.append(f'v_max3_f32 v{TMAX}, v{TMAX}, v{sn+15}, v{sn+31}')
    Ls.append(f'v_max_f32 v{TMAX}, v{TMAX}, v{T0}')
    return Ls

def kv_dma(a, isv, slot):
    off = S_VOFF if isv else S_KOFF
    sr = S_VS if isv else S_KS
    a(f's_add_u32 m0, s{S_M0K}, {(32768 if isv else 0) + slot*16384}')
    a('s_nop 0')
    for i in range(4):
        a(f'buffer_load_dwordx4 v{VDMA}, s[{sr}:{sr+3}], s{off} offen offset:{i*1024} lds')
    a(f's_add_u32 s{off}, s{off}, 32768')

def cross_max(a):
    a(f'v_mov_b32 v{T0}, v{TMAX}')
    a('s_nop 1')
    a(f'v_permlane32_swap_b32 v{TMAX}, v{T0}')
    a(f'v_max_f32 v{TMAX}, v{TMAX}, v{T0}')

def init_path(a, sn):
    cross_max(a)
    a(f'v_max_f32 v{M}, s{S_NEGBIG}, v{TMAX}')
    for i in range(32): a(f'v_sub_f32 v{sn+i}, v{sn+i}, v{M}')
    for i in range(16): a(f'v_sub_f32 v{NEGM+i}, 0, v{M}')

def mask_block(a, sn):
    a(f'v_mov_b32 v{T0+1}, 0xff800000')
    for base in range(0, 32, 4):
        for j in range(4):
            r = base + j
            c = 32*(r >> 4) + 16*((r >> 3) & 1) + (r & 7)
            a(f'v_cmp_gt_i32 s[{70+2*j}:{71+2*j}], {c}, v{QQ}')
        for j in range(4):
            r = base + j
            if j == 0: a('s_nop 0')
            a(f'v_cndmask_b32 v{sn+r}, v{sn+r}, v{T0+1}, s[{70+2*j}:{71+2*j}]')

def emit_mix(a, items):
    for it in items: a(it)

def iteration(a, par, tail):
    sc, sn = S[par], S[par ^ 1]
    kslot, vslot = par ^ 1, par
    a('s_waitcnt vmcnt(0)')
    a('s_barrier')
    reads = []
    if not tail:
        reads = [kread(i, kslot) for i in range(16)]
    reads += [vread(i, vslot) for i in range(16)]
    mf = ([] if tail else [qk_mfma(i, sn) for i in range(16)]) + [pv_mfma(i) for i in range(16)]
    if not tail:
        a(f's_cmp_eq_u32 s{S_N}, s{S_NA}')
        a(f's_cbranch_scc1 QSWAP{par}')
        a.label(f'QSWAP_RET{par}')
    for i in range(DIST): a(reads[i])
    if not tail:
        a(f's_add_u32 s3, s{S_N}, 2')
        a(f's_cmp_eq_u32 s3, s{S_NA1}')
        a(f's_cselect_b32 s{S_KOFF}, s{S_G16}, s{S_KOFF}')
        if par == 1:
            a(f's_cmp_eq_u32 s{S_N}, 15')
            a(f's_cbranch_scc1 SKIPK')
        kv_dma(a, False, par)
        if par == 1: a.label('SKIPK')
        a(f's_cmp_eq_u32 s{S_N}, s{S_NA}')
        a(f's_cselect_b32 s{S_VOFF}, s{S_G16}, s{S_VOFF}')
        kv_dma(a, True, par ^ 1)
    nm = len(mf)
    fill = [[] for _ in range(nm)]
    pre = []
    g = [sm_group(sc, ks) for ks in range(4)]
    if not tail:
        v1 = g[0] + g[1] + g[2]
        pre = v1[:8]; v1 = v1[8:]
        for i in range(16):
            lo = len(v1) * i // 16; hi = len(v1) * (i + 1) // 16
            fill[i] += v1[lo:hi]
        for i in range(6):
            lo = len(g[3]) * i // 6; hi = len(g[3]) * (i + 1) // 6
            fill[16 + i] += g[3][lo:hi]
        fill[16 + 6] += [f's_add_u32 s3, s{S_N}, 1', f's_cmp_eq_u32 s3, s{S_NA}', f's_cbranch_scc1 MASK{par}']
        if par == 1:
            fill[16 + 6] += [f's_cmp_eq_u32 s{S_N}, 15', f's_cbranch_scc1 MASK{par}']
        fill[16 + 6] += [f'MASK_RET{par}:']
        mt = max_tree(sn)
        for i in range(8):
            lo = len(mt) * i // 8; hi = len(mt) * (i + 1) // 8
            fill[16 + 7 + i] += mt[lo:hi]
        fill[31] += [f'v_cmp_lt_f32 vcc, s{S_THR}, v{TMAX}']
    else:
        pre = g[0] + ['s_nop 0']
        for k in range(3):
            for i in range(4):
                gg = g[k + 1]
                lo = len(gg) * i // 3; hi = len(gg) * (i + 1) // 3
                if i < 3: fill[k * 4 + i] += gg[lo:hi]
                else: fill[k * 4 + i] += ['s_nop 0']
    emit_mix(a, pre)
    for i in range(nm):
        outstanding = min(len(reads), i + DIST) - (i + 1)
        a(f's_waitcnt lgkmcnt({outstanding})')
        a(mf[i])
        if i + DIST < len(reads): a(reads[i + DIST])
        for x in fill[i]:
            if x.endswith(':'): a.label(x[:-1])
            else: a(x)
    if not tail:
        a(f's_cmp_eq_u32 s{S_N}, s{S_NA}')
        a(f's_cbranch_scc1 BOUND{par}')
        a(f's_cbranch_vccnz RESC{par}')
        a.label(f'IT_RET{par}')
        a(f's_add_u32 s{S_N}, s{S_N}, 1')

def scratch_addr(a, par):
    a(f's_and_b32 s3, s{S_R}, 1')
    a('s_lshl_b32 s3, s3, 13')
    a(f's_cmp_lt_u32 s{S_R}, 2')
    csel(a, 's4', (par^1)*16384, 32768 + par*16384)
    a('s_add_u32 s3, s3, s4')
    a(f'v_add_u32 v{T0+2}, s3, v{VKV}')

def merge(a, g):
    keep = O + (32 if g else 0); send = O + (0 if g else 32)
    t = T0
    a.label(f'MERGE{g}')
    for j in range(8):
        a(f'ds_write_b128 v{t+2}, v[{send+4*j}:{send+4*j+3}] offset:{j*1024}')
    a('s_waitcnt lgkmcnt(0)')
    a('s_barrier')
    a(f'v_xor_b32 v{t+3}, 2048, v{t+3}')
    a(f'v_xor_b32 v{t+2}, 0x10000, v{t+2}')
    a(f'ds_read_b64 v[{t+4}:{t+5}], v{t+3}')
    for j in range(8):
        a(f'ds_read_b128 v[{FR+4*j}:{FR+4*j+3}], v{t+2} offset:{j*1024}')
    a('s_waitcnt lgkmcnt(8)')
    a(f'v_max_f32 v{t}, v{M}, v{t+4}')
    a(f'v_sub_f32 v{t+1}, v{M}, v{t}')
    a(f'v_sub_f32 v{t+4}, v{t+4}, v{t}')
    a(f'v_exp_f32 v{t+1}, v{t+1}')
    a(f'v_exp_f32 v{t+4}, v{t+4}')
    a('s_nop 0')
    a(f'v_mul_f32 v{L}, v{L}, v{t+1}')
    a(f'v_fmac_f32 v{L}, v{t+5}, v{t+4}')
    a(f'v_rcp_f32 v{L}, v{L}')
    a('s_nop 0')
    a(f'v_mul_f32 v{t+1}, v{t+1}, v{L}')
    a(f'v_mul_f32 v{t+4}, v{t+4}, v{L}')
    for i in range(32): a(f'v_mul_f32 v{keep+i}, v{keep+i}, v{t+1}')
    a(f's_lshl_b32 s3, s{S_QB}, 3')
    a(f's_lshl_b32 s4, s{S_R}, 1')
    a('s_add_u32 s3, s3, s4')
    a(f's_mul_i32 s3, s3, {NKS}')
    a(f's_lshl_b32 s4, s{S_HEAD}, 2')
    a('s_add_u32 s3, s3, s4')
    a(f's_add_u32 s3, s3, {2*g}')
    a('s_lshl_b32 s3, s3, 10')
    for q in range(4):
        a(f's_waitcnt lgkmcnt({6 - 2*q})')
        for i in range(8): a(f'v_fmac_f32 v{keep+q*8+i}, v{FR+q*8+i}, v{t+4}')
        for j in range(4): a(f'v_cvt_pk_bf16_f32 v{P+q*4+j}, v{keep+q*8+2*j}, v{keep+q*8+2*j+1}')
        a(f'buffer_store_dwordx4 v[{P+q*4}:{P+q*4+3}], v{VST}, s[{S_AS}:{S_AS+3}], s3 offen offset:{q*512}')
    a('s_branch MERGE_RET')

def merge_call(a, par, ret):
    t = T0
    a(f's_mov_b32 s{S_RET}, {ret}')
    scratch_addr(a, par)
    a(f'v_add_f32 v{L}, v{L}, v{L2}')
    a(f'v_mov_b32 v{t}, v{L}')
    a(f's_lshl_b32 s3, s{S_WAVE}, 9')
    a(f's_add_u32 s3, s3, {QB_LDS}')
    a(f'v_permlane32_swap_b32 v{L}, v{t}')
    a(f'v_add_f32 v{L}, v{L}, v{t}')
    a(f'v_lshl_add_u32 v{t+3}, v{VLN}, 3, s3')
    a('s_nop 4')
    a('s_barrier')
    a(f'ds_write_b64 v{t+3}, v[{M}:{L}]')
    a(f's_cmp_eq_u32 s{S_G}, 0')
    a('s_cbranch_scc1 MERGE0')
    a('s_branch MERGE1')

def k2(a):
    a.raw('.p2align 8'); a.raw('.globl k2_kernel'); a.raw('.type k2_kernel,@function')
    a.label('k2_kernel')
    common_ids(a, 'K2_DONE')
    a('s_load_dwordx2 s[28:29], s[0:1], 16')
    a('s_load_dwordx4 s[32:35], s[0:1], 56')
    a('s_load_dwordx2 s[36:37], s[0:1], 96')
    a(f'v_mov_b32 v{VLN}, v{VL}')
    a(f's_lshr_b32 s{S_G}, s{S_WAVE}, 2')
    a(f's_and_b32 s{S_R}, s{S_WAVE}, 3')
    a(f's_sub_u32 s{S_NA}, 15, s{S_MT}')
    a(f's_add_u32 s{S_NA1}, s{S_NA}, 1')
    gemm_lds_addrs(a, False)
    a(f's_lshl_b32 s3, s{S_R}, 13')
    a(f's_and_b32 s4, s{S_R}, 1')
    a('s_lshl_b32 s4, s4, 6')
    a(f's_cmp_lt_u32 s{S_R}, 2')
    a('s_cselect_b32 s3, s3, 0x4000')
    a('s_cselect_b32 s4, 0, s4')
    a('s_cselect_b32 s5, 64, 0x2000')
    a('s_add_u32 s3, s3, 0x10000')
    a(f'v_xor_b32 v{WA}, s4, v{VT+4}')
    a(f'v_add_u32 v{WA}, s3, v{WA}')
    a(f'v_xor_b32 v{WA+1}, s5, v{WA}')
    a(f's_cmp_lt_u32 s{S_WAVE}, 4')
    a(f's_cselect_b32 s5, s{S_NA}, s{S_MT}')
    csel(a, 's6', 8192, 3456)
    a('s_lshl_b32 s5, s5, 7')
    a(f's_lshl_b32 s7, s{S_R}, 5')
    a('s_add_u32 s5, s5, s7')
    a(f's_bfe_u32 s7, s{S_WAVE}, 0x10001')
    a('s_lshl_b32 s7, s7, 7')
    a(f's_lshl_b32 s38, s{S_HEAD}, 8')
    a('s_add_u32 s7, s7, s38')
    a(f's_lshl_b32 s38, s{S_HEAD}, 7')
    a(f's_cmp_lt_u32 s{S_WAVE}, 4')
    a('s_cselect_b32 s7, s7, s38')
    gemm_dma_voffs(a, 1280, 's5', 's6', 's7')
    a('s_waitcnt lgkmcnt(0)')
    srd(a, S_XS, 36, 37, 2048*1280)
    a(f's_cmp_lt_u32 s{S_WAVE}, 6')
    a('s_cselect_b32 s38, s32, s34')
    a('s_cselect_b32 s39, s33, s35')
    a(f's_cmp_lt_u32 s{S_HEAD}, 27')
    a(f's_cselect_b32 s40, {640*3456}, 0')
    a(f's_cmp_lt_u32 s{S_WAVE}, 4')
    a('s_cselect_b32 s38, s28, s38')
    a('s_cselect_b32 s39, s29, s39')
    a(f's_cselect_b32 s40, {640*8192}, s40')
    srd(a, S_WS, 38, 39, 's40')
    for l in gemm_dma(0): a(l)
    for l in gemm_dma(1): a(l)
    a(f's_lshl_b32 s39, s{S_HEAD}, 19')
    a(f's_add_u32 s38, s39, {WS_KF}')
    srd_off(a, S_KS, 36, 37, 's38', 512*1024)
    a(f's_add_u32 s38, s39, {WS_VF}')
    srd_off(a, S_VS, 36, 37, 's38', 512*1024)
    srd_off(a, S_AS, 36, 37, WS_A3, 128*A3_MT)
    a(f's_lshl_b32 s{S_G16}, s{S_G}, 14')
    a(f's_mov_b32 s{S_KOFF}, s{S_G16}')
    a(f's_mov_b32 s{S_VOFF}, s{S_G16}')
    a(f's_lshl_b32 s3, s{S_G}, 16')
    a(f's_lshl_b32 s4, s{S_R}, 12')
    a(f's_add_u32 s{S_M0K}, s3, s4')
    a(f'v_lshl_add_u32 v{VKV}, v{VLN}, 4, s3')
    a(f'v_lshl_add_u32 v{VDMA}, v{VLN}, 4, s4')
    a(f's_mov_b32 s{S_THR}, 0x41000000')
    a(f's_mov_b32 s{S_NEGBIG}, {hex(f32(-1e30))}')
    a(f's_mov_b32 s{S_N}, 0')
    a(f's_mov_b32 s{S_QB}, s{S_NA}')
    a(f'v_and_b32 v{QQ}, 31, v{VLN}')
    a(f'v_lshrrev_b32 v{T0}, 5, v{VLN}')
    a(f'v_lshlrev_b32 v{T0+1}, 3, v{T0}')
    a(f'v_sub_u32 v{QQ}, v{QQ}, v{T0+1}')
    a(f's_lshl_b32 s3, s{S_R}, 5')
    a(f's_lshl_b32 s4, s{S_G}, 6')
    a('s_sub_u32 s3, s3, s4')
    a(f'v_add_u32 v{QQ}, s3, v{QQ}')
    a(f'v_bfe_u32 v{T0+1}, v{VLN}, 4, 1')
    a(f'v_mul_u32_u24 v{VST}, {A3_MT}, v{T0+1}')
    a(f'v_lshl_add_u32 v{VST}, v{T0}, 8, v{VST}')
    a(f'v_and_b32 v{T0+1}, 15, v{VLN}')
    a(f'v_lshl_add_u32 v{VST}, v{T0+1}, 4, v{VST}')
    a('s_waitcnt vmcnt(8)')
    a('s_barrier')
    gemm_main(a, 10, False)
    a('s_barrier')
    kv_dma(a, False, 0)
    kv_dma(a, True, 0)
    kv_dma(a, False, 1)
    a(f's_cmp_lt_u32 s{S_R}, 2')
    a('s_cbranch_scc0 K2_GU')
    a(f's_mov_b32 s5, {hex(f32(math.log2(math.e) / math.sqrt(128)))}')
    a(f's_lshl_b32 s3, s{S_R}, 12')
    a(f's_cmp_eq_u32 s{S_G}, 0')
    csel(a, 's4', 49152, QB_LDS)
    csel(a, 's6', 65536, 16384)
    a('s_add_u32 s3, s3, s4')
    a(f'v_lshl_add_u32 v{T0}, v{VLN}, 4, s3')
    a(f'v_add_u32 v{T0+1}, s6, v{T0}')
    k = 0
    for rt in range(4):
        for ct in range(2):
            for hf in range(2):
                src = ACC + (rt*2+ct)*16 + hf*8
                dst = 128 + (k % 8) * 4; k += 1
                for j in range(8): a(f'v_mul_f32 v{src+j}, s5, v{src+j}')
                for j in range(4): a(f'v_cvt_pk_bf16_f32 v{dst+j}, v{src+2*j}, v{src+2*j+1}')
                a(f'ds_write_b128 v{T0 + (rt >> 1)}, v[{dst}:{dst+3}] offset:{(rt&1)*8192 + (2*ct+hf)*1024}')
    a('s_branch K2_ATT')
    a.label('K2_GU')
    a(f's_cmp_ge_u32 s{S_HEAD}, 27')
    a('s_cbranch_scc1 K2_ATT')
    a(f's_cmp_eq_u32 s{S_G}, 0')
    a(f's_cselect_b32 s3, s{S_NA}, s{S_MT}')
    a(f's_mul_i32 s3, s3, {8*NKS}')
    a(f's_lshl_b32 s4, s{S_HEAD}, 1')
    a('s_add_u32 s3, s3, s4')
    a(f's_and_b32 s4, s{S_R}, 1')
    a('s_add_u32 s3, s3, s4')
    a('s_add_u32 s3, s3, 128')
    a('s_lshl_b32 s3, s3, 10')
    k = 0
    for rt in range(4):
        for hf in range(2):
            gs = ACC + (rt*2)*16 + hf*8; us = gs + 16
            dst = 128 + (k % 8) * 4; k += 1
            for j in range(8):
                a(f'v_max_f32 v{gs+j}, 0, v{gs+j}')
                a(f'v_mul_f32 v{gs+j}, v{gs+j}, v{us+j}')
            for j in range(4): a(f'v_cvt_pk_bf16_f32 v{dst+j}, v{gs+2*j}, v{gs+2*j+1}')
            a(f'buffer_store_dwordx4 v[{dst}:{dst+3}], v{VST}, s[{S_AS}:{S_AS+3}], s3 offen offset:{hf*512}')
        a(f's_add_u32 s3, s3, {2*A3_MT}')
    a.label('K2_ATT')
    a('s_waitcnt vmcnt(0) lgkmcnt(0)')
    a('s_barrier')
    a(f's_lshr_b32 s3, s{S_R}, 1')
    a('s_lshl_b32 s3, s3, 16')
    a(f's_and_b32 s4, s{S_R}, 1')
    a('s_lshl_b32 s4, s4, 13')
    a('s_add_u32 s3, s3, s4')
    a('s_add_u32 s3, s3, 49152')
    a(f'v_lshl_add_u32 v{T0}, v{VLN}, 4, s3')
    for ds in range(8): a(f'ds_read_b128 v[{Q+ds*4}:{Q+ds*4+3}], v{T0} offset:{ds*1024}')
    for i in range(64): a(f'v_mov_b32 v{O+i}, 0')
    for i in range(16): a(f'v_mov_b32 v{NEGM+i}, 0')
    a(f'v_mov_b32 v{L}, 0'); a(f'v_mov_b32 v{L2}, 0')
    for i in range(DIST): a(kread(i, 0))
    for i in range(16):
        a(f's_waitcnt lgkmcnt({min(16, i + DIST) - (i + 1)})')
        a(qk_mfma(i, S[0]))
        if i + DIST < 16: a(kread(i + DIST, 0))
    a('s_nop 7'); a('s_nop 3')
    for x in max_tree(S[0]): a(x)
    init_path(a, S[0])
    a.label('K2_LOOP')
    iteration(a, 0, False)
    iteration(a, 1, False)
    a(f's_cmp_lt_u32 s{S_N}, 16')
    a('s_cbranch_scc1 K2_LOOP')
    iteration(a, 0, True)
    merge_call(a, 0, 2)
    for par in range(2):
        sn = S[par ^ 1]
        a.label(f'QSWAP{par}')
        a(f's_lshl_b32 s3, s{S_R}, 13')
        a(f's_add_u32 s3, s3, {QB_LDS}')
        a(f'v_lshl_add_u32 v{T0}, v{VLN}, 4, s3')
        for ds in range(8): a(f'ds_read_b128 v[{Q+ds*4}:{Q+ds*4+3}], v{T0} offset:{ds*1024}')
        for i in range(16): a(f'v_mov_b32 v{NEGM+i}, 0')
        a('s_waitcnt lgkmcnt(0)')
        a(f's_branch QSWAP_RET{par}')
        a.label(f'MASK{par}')
        a('s_nop 7')
        mask_block(a, sn)
        a(f's_branch MASK_RET{par}')
        a.label(f'RESC{par}')
        cross_max(a)
        a(f'v_max_f32 v{TMAX}, 0, v{TMAX}')
        a(f'v_add_f32 v{M}, v{M}, v{TMAX}')
        a(f'v_exp_f32 v{T0}, -v{TMAX}')
        for i in range(32): a(f'v_sub_f32 v{sn+i}, v{sn+i}, v{TMAX}')
        for i in range(16): a(f'v_sub_f32 v{NEGM+i}, 0, v{M}')
        a(f'v_mul_f32 v{L}, v{L}, v{T0}')
        a(f'v_mul_f32 v{L2}, v{L2}, v{T0}')
        for i in range(64): a(f'v_mul_f32 v{O+i}, v{O+i}, v{T0}')
        a(f's_branch IT_RET{par}')
        a.label(f'BOUND{par}')
        merge_call(a, par, par)
        a.label(f'BOUND_RET{par}')
        for i in range(64): a(f'v_mov_b32 v{O+i}, 0')
        a(f'v_mov_b32 v{L}, 0'); a(f'v_mov_b32 v{L2}, 0')
        a(f's_mov_b32 s{S_QB}, s{S_MT}')
        init_path(a, sn)
        a(f's_branch IT_RET{par}')
    merge(a, 0)
    merge(a, 1)
    a.label('MERGE_RET')
    a(f's_cmp_eq_u32 s{S_RET}, 0')
    a('s_cbranch_scc1 BOUND_RET0')
    a(f's_cmp_eq_u32 s{S_RET}, 1')
    a('s_cbranch_scc1 BOUND_RET1')
    a.label('K2_DONE')
    a('s_endpgm')
```

```python
from gen2 import *

def k3(a):
    NST = 4
    ACC3 = 0; F3 = 80; VA = 224; VL3 = 230; TT = 232
    a.raw('.p2align 8'); a.raw('.globl k3_kernel'); a.raw('.type k3_kernel,@function')
    a.label('k3_kernel')
    common_ids(a, 'K3_DONE')
    a('s_load_dwordx2 s[24:25], s[0:1], 0')
    a('s_load_dwordx2 s[26:27], s[0:1], 80')
    a('s_load_dwordx2 s[36:37], s[0:1], 96')
    a(f'v_mov_b32 v{VL3}, v{VL}')
    a(f'v_lshlrev_b32 v{VA}, 4, v{VL}')
    for i in range(1, 5): a(f'v_add_u32 v{VA+i}, {A3_MT}, v{VA+i-1}')
    a(f's_mul_i32 s3, s{S_WAVE}, 23')
    a(f's_cmp_eq_u32 s{S_WAVE}, 7')
    a('s_cselect_b32 s4, 1, 0')
    a('s_sub_u32 s3, s3, s4')
    a(f's_cmp_lt_u32 s{S_WAVE}, 6')
    a('s_cselect_b32 s30, 23, 22')
    a(f's_mul_i32 s28, s{S_HEAD}, {4*NKS}')
    a('s_add_u32 s28, s28, s3')
    a('s_lshl_b32 s28, s28, 10')
    a(f's_mul_i32 s29, s{S_MT}, {5*NKS}')
    a('s_add_u32 s29, s29, s3')
    a('s_lshl_b32 s29, s29, 10')
    a('s_waitcnt lgkmcnt(0)')
    srd_off(a, 8, 36, 37, WS_A3, 128*A3_MT)
    srd_off(a, 12, 36, 37, WS_W3, 40*A3_MT)
    def loads(st):
        Ls = []
        f = F3 + st * 36
        for i in range(5):
            Ls.append(f'buffer_load_dwordx4 v[{f+16+i*4}:{f+16+i*4+3}], v{VA+i}, s[12:15], s29 offen')
            if i < 4:
                Ls.append(f'buffer_load_dwordx4 v[{f+i*4}:{f+i*4+3}], v{VA+i}, s[8:11], s28 offen')
        Ls.append('s_add_u32 s28, s28, 1024')
        Ls.append('s_add_u32 s29, s29, 1024')
        return Ls
    for st in range(NST - 1):
        for l in loads(st): a(l)
    for i in range(80): a(f'v_mov_b32 v{ACC3+i}, 0')
    a.label('K3_LOOP')
    for st in range(NST):
        f = F3 + st * 36
        mf = []
        for nt in range(5):
            for mt in range(4):
                d = ACC3 + (nt*4+mt)*4
                mf.append(f'v_mfma_f32_16x16x32_bf16 v[{d}:{d+3}], v[{f+16+nt*4}:{f+16+nt*4+3}], v[{f+mt*4}:{f+mt*4+3}], v[{d}:{d+3}]')
        a(f's_waitcnt vmcnt({9*(NST-2)})')
        interleave(a, mf, loads((st + NST - 1) % NST))
        a('s_sub_u32 s30, s30, 1')
        a('s_cmp_eq_u32 s30, 0')
        if st < NST - 1: a('s_cbranch_scc1 K3_RED')
        else: a('s_cbranch_scc0 K3_LOOP')
    a.label('K3_RED')
    a(f's_mul_i32 s3, s{S_WAVE}, 20480')
    a(f'v_add_u32 v{TT}, s3, v{VA}')
    srd(a, 16, 24, 25, 2048*1280)
    srd(a, 40, 26, 27, 2048*1280)
    a(f'v_and_b32 v{TT+1}, 15, v{VL3}')
    a(f'v_mul_u32_u24 v{TT+1}, 1280, v{TT+1}')
    a(f'v_lshrrev_b32 v{TT+2}, 4, v{VL3}')
    a(f'v_lshl_add_u32 v{TT+1}, v{TT+2}, 3, v{TT+1}')
    for t in range(20):
        a(f'ds_write_b128 v{TT}, v[{ACC3+t*4}:{ACC3+t*4+3}] offset:{t*1024}')
    a(f's_and_b32 s3, s{S_WAVE}, 3')
    a(f's_lshl_b32 s4, s{S_HEAD}, 2')
    a('s_add_u32 s3, s3, s4')
    a(f's_mul_i32 s3, s3, {16*1280}')
    a(f's_mul_i32 s4, s{S_MT}, 160')
    a('s_add_u32 s3, s3, s4')
    a(f's_lshr_b32 s4, s{S_WAVE}, 2')
    a('s_lshl_b32 s4, s4, 5')
    a('s_add_u32 s3, s3, s4')
    a('s_waitcnt vmcnt(0)')
    for j in range(3):
        a(f'buffer_load_dwordx2 v[{200+2*j}:{201+2*j}], v{TT+1}, s[16:19], s3 offen offset:{64*j}')
    a(f's_lshl_b32 s4, s{S_WAVE}, 10')
    a(f'v_add_u32 v{TT}, s4, v{VA}')
    a(f'v_add_u32 v{TT+2}, {4*20480}, v{TT}')
    a('s_waitcnt lgkmcnt(0)')
    a('s_barrier')
    for j in range(3):
        if j == 2:
            a(f's_cmp_ge_u32 s{S_WAVE}, 4')
            a('s_cbranch_scc1 K3_DONE')
        b = 80 + j * 32
        for w in range(8):
            base = TT if w < 3 else (TT + 2 if w >= 4 and w < 7 else None)
            if base is None:
                a(f'v_add_u32 v{TT+3}, {w*20480}, v{TT}')
                a(f'ds_read_b128 v[{b+w*4}:{b+w*4+3}], v{TT+3} offset:{j*8192}')
            else:
                a(f'ds_read_b128 v[{b+w*4}:{b+w*4+3}], v{base} offset:{(w&3)*20480 + j*8192}')
        a(f's_waitcnt vmcnt({2 if j < 2 else 2})')
        a(f'v_lshlrev_b32 v{TT+4}, 16, v{200+2*j}')
        a(f'v_and_b32 v{TT+5}, 0xffff0000, v{200+2*j}')
        a(f'v_lshlrev_b32 v{TT+6}, 16, v{201+2*j}')
        a(f'v_and_b32 v{TT+7}, 0xffff0000, v{201+2*j}')
        for w in range(8):
            a(f's_waitcnt lgkmcnt({7-w})')
            for i in range(4): a(f'v_add_f32 v{TT+4+i}, v{TT+4+i}, v{b+w*4+i}')
        a(f'v_cvt_pk_bf16_f32 v{210+2*j}, v{TT+4}, v{TT+5}')
        a(f'v_cvt_pk_bf16_f32 v{211+2*j}, v{TT+6}, v{TT+7}')
        a(f'buffer_store_dwordx2 v[{210+2*j}:{211+2*j}], v{TT+1}, s[40:43], s3 offen offset:{64*j}')
    a.label('K3_DONE')
    a('s_endpgm')

HDR = open('parallel_sum__compressed_kv_cla__glu_gated_reglu__prompt.s.ref').read().split('; Override')[0]

def desc(name, lds=0):
    return f""".p2align 6
.amdhsa_kernel {name}
  .amdhsa_next_free_vgpr 256
  .amdhsa_next_free_sgpr 96
  .amdhsa_accum_offset 256
  .amdhsa_group_segment_fixed_size 0
  .amdhsa_kernarg_size 104
  .amdhsa_user_sgpr_count 2
  .amdhsa_user_sgpr_kernarg_segment_ptr 1
  .amdhsa_system_sgpr_workgroup_id_x 1
.end_amdhsa_kernel
"""

def main(out):
    a = Asm()
    k1(a); k2(a); k3(a)
    for p in check_hazards(a.lines): print(p)
    txt = HDR
    txt += '; @launch kernel=k1_kernel grid=(256,1,1) block=(512,1,1) lds=131072\n'
    txt += '; @launch kernel=k2_kernel grid=(256,1,1) block=(512,1,1) lds=163840\n'
    txt += '; @launch kernel=k3_kernel grid=(256,1,1) block=(512,1,1) lds=163840\n'
    txt += '.amdgcn_target "amdgcn-amd-amdhsa--gfx950"\n.text\n' + a.text()
    txt += '.section .rodata,"a"\n' + desc('k1_kernel') + desc('k2_kernel') + desc('k3_kernel')
    open(out, 'w').write(txt)

if __name__ == '__main__':
    import sys
    main(sys.argv[1] if len(sys.argv) > 1 else 'parallel_sum__compressed_kv_cla__glu_gated_reglu__prompt.s')
```

```python
from asmlib import *

WS_XN = 0
WS_KF = 0x400000
WS_VF = 0x1400000
WS_A3 = 0x2400000
WS_CNT = 0x300000
NKS = 182
A3_MT = NKS * 1024

ACC = 0
XF = [128, 152]
WF = [144, 168]
XA = 176
WA = 180
DX = 182
DW = 186
VL = 190
VT = 191
TX, TW, TD = 198, 199, 197
S_XS = 8
S_WS = 12
S_XOFF, S_WOFF, S_WSTEP, S_M0X, S_M0W = 16, 17, 18, 19, 20
S_WAVE, S_HEAD, S_MT = 21, 22, 23

def srd(a, d, lo, hi, size):
    a(f's_mov_b32 s{d}, s{lo}')
    a(f's_and_b32 s{d+1}, s{hi}, 0xffff')
    a(f's_mov_b32 s{d+2}, {size}')
    a(f's_mov_b32 s{d+3}, 0x20000')

def srd_off(a, d, lo, hi, off, size):
    a(f's_add_u32 s{d}, s{lo}, {off}')
    a(f's_addc_u32 s{d+1}, s{hi}, 0')
    a(f's_and_b32 s{d+1}, s{d+1}, 0xffff')
    a(f's_mov_b32 s{d+2}, {size}')
    a(f's_mov_b32 s{d+3}, 0x20000')

import os
STAMPS = os.environ.get('STAMPS') == '1'
SC = os.environ.get('SC', '')
_nst = [0]
def stamp_reset(): _nst[0] = 0
def stamp(a):
    if not STAMPS: return
    i = _nst[0]; _nst[0] += 1
    if i == 0: a('s_memrealtime s[94:95]')
    a('s_memtime s[78:79]')
    a('s_waitcnt lgkmcnt(0)')
    a(f's_mov_b32 s{80+i}, s78')
def stamp_flush(a, extra=0):
    if not STAMPS: return
    lab = f'STF{len(a.lines)}'
    stamp(a)
    a('s_waitcnt vmcnt(0)')
    stamp(a)
    a('s_and_b32 s78, s2, 0xf9')
    a(f's_or_b32 s78, s78, s{S_WAVE}')
    a('s_cmp_eq_u32 s78, 0')
    a(f's_cbranch_scc0 {lab}')
    a('s_load_dwordx2 s[76:77], s[0:1], 88')
    a('s_memrealtime s[92:93]')
    a('s_waitcnt lgkmcnt(0)')
    srd_off(a, 72, 76, 77, extra, 256)
    a('s_lshl_b32 s78, s2, 5')
    a('v_mov_b32 v1, 0')
    for i in range(_nst[0]):
        a(f's_sub_u32 s79, s{80+i}, s80')
        a('v_mov_b32 v2, s79')
        a(f'buffer_store_dword v2, v1, s[72:75], s78 offen offset:{4*i}')
    a('v_mov_b32 v2, s94')
    a('buffer_store_dword v2, v1, s[72:75], s78 offen offset:56')
    a('v_mov_b32 v2, s92')
    a('buffer_store_dword v2, v1, s[72:75], s78 offen offset:60')
    a.label(lab)

def csel(a, d, x, y):
    a(f's_mov_b32 {d}, {y}')
    a(f's_cselect_b32 {d}, {x}, {d}')

def common_ids(a, done):
    a('s_cmp_ge_u32 s2, 256')
    a(f's_cbranch_scc1 {done}')
    a(f'v_and_b32 v{VL}, 63, v0')
    a(f'v_lshrrev_b32 v{VT}, 6, v0')
    a('s_nop 0')
    a(f'v_readfirstlane_b32 s{S_WAVE}, v{VT}')
    a('s_and_b32 s3, s2, 7')
    a('s_lshr_b32 s4, s2, 3')
    a(f's_and_b32 s{S_HEAD}, s4, 3')
    a('s_lshl_b32 s3, s3, 2')
    a(f's_add_u32 s{S_HEAD}, s{S_HEAD}, s3')
    a(f's_lshr_b32 s{S_MT}, s4, 2')

def gemm_lds_addrs(a, pi_rows):
    t = VT
    a(f'v_and_b32 v{t}, 31, v{VL}')
    if pi_rows:
        a(f'v_and_b32 v{t+1}, 0x13, v{t}')
        a(f'v_bfe_u32 v{t+2}, v{t}, 2, 1')
        a(f'v_lshl_or_b32 v{t+1}, v{t+2}, 3, v{t+1}')
        a(f'v_bfe_u32 v{t+2}, v{t}, 3, 1')
        a(f'v_lshl_or_b32 v{t}, v{t+2}, 2, v{t+1}')
    a(f'v_bfe_u32 v{t+1}, v{t}, 1, 3')
    a(f'v_lshrrev_b32 v{t+2}, 5, v{VL}')
    a(f'v_xor_b32 v{t+1}, v{t+1}, v{t+2}')
    a(f'v_lshlrev_b32 v{t+1}, 4, v{t+1}')
    a(f'v_lshl_or_b32 v{t+1}, v{t}, 7, v{t+1}')
    a(f's_lshr_b32 s3, s{S_WAVE}, 2')
    a('s_lshl_b32 s3, s3, 14')
    a(f'v_add_u32 v{XA}, s3, v{t+1}')
    for s in range(1, 4):
        a(f'v_xor_b32 v{XA+s}, {s*32}, v{XA}')
    a(f'v_bfe_u32 v{t}, v{VL}, 2, 2')
    a(f'v_lshl_add_u32 v{t+1}, v{t+2}, 3, v{t}')
    a(f'v_lshlrev_b32 v{t+4}, 7, v{t+1}')
    a(f'v_bfe_u32 v{t+1}, v{VL}, 4, 1')
    a(f'v_lshl_or_b32 v{t+4}, v{t+1}, 5, v{t+4}')
    a(f'v_and_b32 v{t+1}, 1, v{VL}')
    a(f'v_lshl_or_b32 v{t+4}, v{t+1}, 4, v{t+4}')
    a(f'v_bfe_u32 v{t+1}, v{VL}, 1, 1')
    a(f'v_lshl_or_b32 v{t+4}, v{t+1}, 3, v{t+4}')
    a(f'v_bfe_u32 v{t+1}, v{VL}, 3, 1')
    a(f'v_lshl_or_b32 v{t+4}, v{t+1}, 6, v{t+4}')

def gemm_dma_voffs(a, xstride, s_rowbase, s_wstride, s_wcol):
    t = VT
    a(f'v_lshrrev_b32 v{t}, 3, v{VL}')
    a(f'v_and_b32 v{t+1}, 7, v{VL}')
    a(f'v_lshrrev_b32 v{t+2}, 4, v{VL}')
    a(f'v_xor_b32 v{t+2}, v{t+1}, v{t+2}')
    a(f'v_add_u32 v{t+3}, {s_rowbase}, v{t}')
    a(f's_mov_b32 s3, {xstride}')
    a(f'v_mul_lo_u32 v{t+3}, v{t+3}, s3')
    for i in range(4):
        if i & 1:
            a(f'v_xor_b32 v{t+5}, 4, v{t+2}')
            a(f'v_lshl_add_u32 v{DX+i}, v{t+5}, 4, v{t+3}')
        else:
            a(f'v_lshl_add_u32 v{DX+i}, v{t+2}, 4, v{t+3}')
        if i:
            a(f'v_add_u32 v{DX+i}, {i*(8*xstride-1024)}, v{DX+i}')
    a(f'v_bfe_u32 v{t+2}, v{VL}, 4, 1')
    a(f'v_lshlrev_b32 v{t+2}, 2, v{t+2}')
    a(f'v_xor_b32 v{t+2}, v{t+1}, v{t+2}')
    a(f's_and_b32 s3, s{S_WAVE}, 1')
    a('s_lshl_b32 s3, s3, 5')
    a(f'v_add_u32 v{t+3}, s3, v{t}')
    a(f'v_mul_lo_u32 v{t+3}, v{t+3}, {s_wstride}')
    a(f'v_lshl_add_u32 v{t+3}, v{t+2}, 4, v{t+3}')
    a(f'v_add_u32 v{DW}, {s_wcol}, v{t+3}')
    a(f's_lshl_b32 s3, {s_wstride}, 3')
    a('s_sub_u32 s3, s3, 1024')
    for i in range(1, 4):
        a(f'v_add_u32 v{DW+i}, s3, v{DW+i-1}')
    a(f's_lshl_b32 s{S_WSTEP}, {s_wstride}, 6')
    a('s_lshr_b32 s3, s2, 3')
    a('s_lshl_b32 s3, s3, 3')
    a(f's_add_u32 s3, s3, s{S_WAVE}')
    a('s_lshl_b32 s3, s3, 3')
    a(f'v_bfe_u32 v{t}, v{VL}, 2, 3')
    a(f'v_add_u32 v{t}, s3, v{t}')
    a(f'v_mul_u32_u24 v{t}, {xstride}, v{t}')
    a(f'v_and_b32 v{t+1}, 3, v{VL}')
    a(f'v_lshl_add_u32 v{TX}, v{t+1}, 6, v{t}')
    a(f's_and_b32 s3, s{S_WAVE}, 1')
    a(f's_lshl_b32 s4, s{S_MT}, 1')
    a('s_add_u32 s3, s3, s4')
    a('s_lshl_b32 s3, s3, 3')
    a('s_add_u32 s3, s3, 64')
    a(f'v_bfe_u32 v{t}, v{VL}, 1, 3')
    a(f'v_add_u32 v{t}, s3, v{t}')
    a(f'v_mul_lo_u32 v{t}, v{t}, {s_wstride}')
    a(f'v_and_b32 v{t+1}, 1, v{VL}')
    a(f'v_lshl_add_u32 v{t}, v{t+1}, 6, v{t}')
    a(f'v_add_u32 v{TW}, {s_wcol}, v{t}')
    a(f's_lshl_b32 s{S_M0X}, s{S_WAVE}, 12')
    a(f's_add_u32 s{S_M0W}, s{S_M0X}, 0x10000')
    a(f's_mov_b32 s{S_XOFF}, 0')
    a(f's_mov_b32 s{S_WOFF}, 0')

def gemm_dma(buf):
    L = []
    L.append(f's_add_u32 m0, s{S_M0X}, {buf*32768}')
    L.append('s_nop 0')
    for i in range(4):
        L.append(f'buffer_load_dwordx4 v{DX+i}, s[{S_XS}:{S_XS+3}], s{S_XOFF} offen offset:{i*1024} lds')
    L.append(f's_add_u32 m0, s{S_M0W}, {buf*32768}')
    L.append(f's_add_u32 s{S_XOFF}, s{S_XOFF}, 128')
    for i in range(4):
        L.append(f'buffer_load_dwordx4 v{DW+i}, s[{S_WS}:{S_WS+3}], s{S_WOFF} offen offset:{i*1024} lds')
    L.append(f's_add_u32 s{S_WOFF}, s{S_WOFF}, s{S_WSTEP}')
    return L

def gemm_dma_x(buf):
    L = [f's_add_u32 m0, s{S_M0X}, {buf*32768}']
    for i in range(4):
        L.append(f'buffer_load_dwordx4 v{DX+i}, s[{S_XS}:{S_XS+3}], s{S_XOFF} offen offset:{i*1024} lds')
    L.append(f's_add_u32 s{S_XOFF}, s{S_XOFF}, 128')
    return L
def gemm_dma_w(buf):
    L = [f's_add_u32 m0, s{S_M0W}, {buf*32768}']
    for i in range(4):
        L.append(f'buffer_load_dwordx4 v{DW+i}, s[{S_WS}:{S_WS+3}], s{S_WOFF} offen offset:{i*1024} lds')
    L.append(f's_add_u32 s{S_WOFF}, s{S_WOFF}, s{S_WSTEP}')
    return L
def emit_dma(a, L):
    a(L[0]); a('s_nop 0')
    for x in L[1:]: a(x)

def gemm_reads(buf, s, f):
    L = []
    for ct in range(2):
        for u in range(2):
            L.append(f'ds_read_b64_tr_b16 v[{WF[f]+ct*4+u*2}:{WF[f]+ct*4+u*2+1}], v{WA+ct} offset:{buf*32768+(16*s+4*u)*128}')
    for rt in range(4):
        L.append(f'ds_read_b128 v[{XF[f]+rt*4}:{XF[f]+rt*4+3}], v{XA+s} offset:{buf*32768+rt*4096}')
    return [L[0], L[1], L[4], L[5], L[2], L[3], L[6], L[7]]

def gemm_mfmas(f, swap, first):
    L = []
    for rt, ct in [(0,0),(1,0),(0,1),(1,1),(2,0),(2,1),(3,0),(3,1)]:
        d = ACC + (rt*2+ct)*16
        x = f'v[{XF[f]+rt*4}:{XF[f]+rt*4+3}]'; w = f'v[{WF[f]+ct*4}:{WF[f]+ct*4+3}]'
        A, B = (x, w) if swap else (w, x)
        c = '0' if first else f'v[{d}:{d+15}]'
        L.append(f'v_mfma_f32_32x32x16_bf16 v[{d}:{d+15}], {A}, {B}, {c}')
    return L

def interleave(a, mf, fill):
    n = len(mf); k = 0
    for i, m in enumerate(mf):
        a(m)
        upto = (len(fill) * (i + 1) + n - 1) // n
        while k < upto:
            a(fill[k]); k += 1

S_CNT = 69
def zero_regs(a, base, n):
    for i in range(0, n, 2): a(f'v_mov_b64 v[{base+i}:{base+i+1}], 0')

def gemm_main(a, nst, swap, lab):
    for r in gemm_reads(0, 0, 0): a(r)
    a(f'buffer_load_dword v{TD}, v{TX}, s[{S_XS}:{S_XS+3}], s{S_XOFF} offen')
    a(f'buffer_load_dword v{TD}, v{TW}, s[{S_WS}:{S_WS+3}], s{S_WOFF} offen')
    a(f's_mov_b32 s{S_CNT}, {nst // 2}')
    a.label(lab)
    a(f's_cmp_eq_u32 s{S_CNT}, 1')
    a(f's_cselect_b32 s{S_XS+2}, 0, s{S_XS+2}')
    for buf in range(2):
        for s in range(4):
            f = s & 1
            if s < 3:
                a('s_waitcnt lgkmcnt(0)')
                fill = gemm_reads(buf, s + 1, f ^ 1)
                if s == 0:
                    d = gemm_dma_w(buf ^ 1)
                    fill = [d[0], fill[0], d[1], fill[1], fill[2], d[2], fill[3], fill[4], d[3], fill[5], fill[6], d[4], fill[7], d[5]]
                    if buf == 0:
                        fill += [f's_cmp_eq_u32 s{S_CNT}, 1', f's_cselect_b32 s{S_WS+2}, 0, s{S_WS+2}']
                if s == 1:
                    if buf == 0: fill.append(f'buffer_load_dword v{TD}, v{TX}, s[{S_XS}:{S_XS+3}], s{S_XOFF} offen offset:256')
                    else: fill.append(f'buffer_load_dword v{TD}, v{TW}, s[{S_WS}:{S_WS+3}], s{S_WOFF} offen')
                interleave(a, gemm_mfmas(f, swap, False), fill)
            else:
                a('s_waitcnt vmcnt(1) lgkmcnt(0)')
                a('s_barrier')
                fill = gemm_reads(buf ^ 1, 0, f ^ 1)
                d = gemm_dma_x(buf)
                fill = [d[0], fill[0], d[1], fill[1], fill[2], d[2], fill[3], fill[4], d[3], fill[5], fill[6], d[4], fill[7], d[5]]
                interleave(a, gemm_mfmas(f, swap, False), fill)
    a(f's_sub_u32 s{S_CNT}, s{S_CNT}, 1')
    a(f's_cmp_lg_u32 s{S_CNT}, 0')
    a(f's_cbranch_scc1 {lab}')

def wave_sum(a, v, t):
    for r in (8, 4, 2, 1):
        a('s_nop 1')
        a(f'v_add_f32_dpp v{v}, v{v}, v{v} row_ror:{r} row_mask:0xf bank_mask:0xf')
    for sw in ('v_permlane16_swap_b32', 'v_permlane32_swap_b32'):
        a(f'v_mov_b32 v{t}, v{v}')
        a('s_nop 1')
        a(f'{sw} v{v}, v{t}')
        a(f'v_add_f32 v{v}, v{v}, v{t}')

def rne_bf16(a, v):
    a(f'v_cvt_pk_bf16_f32 v{v}, v{v}, v{v}')
    a(f'v_and_b32 v{v}, 0xffff0000, v{v}')

def k1(a):
    a.raw('.p2align 8'); a.raw('.globl k1_kernel'); a.raw('.type k1_kernel,@function')
    a.label('k1_kernel')
    common_ids(a, 'K1_DONE')
    stamp_reset(); stamp(a)
    a('s_load_dwordx4 s[24:27], s[0:1], 0')
    a('s_load_dwordx4 s[28:31], s[0:1], 24')
    a('s_load_dwordx2 s[36:37], s[0:1], 96')
    gemm_lds_addrs(a, True)
    a(f's_and_b32 s3, s{S_WAVE}, 3')
    a('s_lshl_b32 s3, s3, 13')
    a('s_add_u32 s3, s3, 0x10000')
    a(f'v_add_u32 v{WA}, s3, v{VT+4}')
    a(f'v_xor_b32 v{WA+1}, 64, v{WA}')
    a(f's_lshl_b32 s5, s{S_MT}, 8')
    a(f's_lshl_b32 s6, s{S_WAVE}, 5')
    a('s_add_u32 s5, s5, s6')
    a('s_mov_b32 s6, 8192')
    a(f's_bfe_u32 s7, s{S_WAVE}, 0x10001')
    a('s_lshl_b32 s7, s7, 7')
    a(f's_lshl_b32 s38, s{S_HEAD}, 8')
    a('s_add_u32 s7, s7, s38')
    gemm_dma_voffs(a, 1024, 's5', 's6', 's7')
    a('s_waitcnt lgkmcnt(0)')
    srd(a, S_XS, 26, 27, 2048*1024)
    a(f's_cmp_lt_u32 s{S_WAVE}, 4')
    a('s_cselect_b32 s38, s28, s30')
    a('s_cselect_b32 s39, s29, s31')
    srd(a, S_WS, 38, 39, 512*8192)
    for l in gemm_dma(0): a(l)
    gw = 40
    a('s_lshl_b32 s40, s2, 3')
    a(f's_add_u32 s40, s40, s{S_WAVE}')
    srd(a, 44, 24, 25, 2048*1280)
    a('s_mul_i32 s41, s40, 1280')
    a(f'v_lshlrev_b32 v200, 2, v{VL}')
    for i in range(5):
        a(f'buffer_load_dword v{201+i}, v200, s[44:47], s41 offen offset:{i*256}')
    emit_dma(a, gemm_dma_x(1))
    a('s_waitcnt vmcnt(4)')
    for i in range(5):
        a(f'v_lshlrev_b32 v{230+2*i}, 16, v{201+i}')
        a(f'v_and_b32 v{231+2*i}, 0xffff0000, v{201+i}')
    a('v_add_f32 v240, v230, v231')
    for i in range(2, 10): a(f'v_add_f32 v240, v240, v{230+i}')
    wave_sum(a, 240, 241)
    a(f'v_mul_f32 v240, {hex(f32(1/640))}, v240')
    a('v_sub_f32 v242, v230, v240')
    a('v_mul_f32 v243, v242, v242')
    for i in range(1, 10):
        a(f'v_sub_f32 v242, v{230+i}, v240')
        a('v_fmac_f32 v243, v242, v242')
    wave_sum(a, 243, 241)
    a(f'v_mul_f32 v243, {hex(f32(1/640))}, v243')
    rne_bf16(a, 240); rne_bf16(a, 243)
    a(f'v_add_f32 v243, {hex(f32(1e-5))}, v243')
    rne_bf16(a, 243)
    a('v_sqrt_f32 v243, v243')
    a('s_nop 0')
    rne_bf16(a, 243)
    a('v_rcp_f32 v243, v243')
    for i in range(5):
        a(f'v_sub_f32 v{230+2*i}, v{230+2*i}, v240')
        a(f'v_sub_f32 v{231+2*i}, v{231+2*i}, v240')
        a(f'v_cvt_pk_bf16_f32 v{201+i}, v{230+2*i}, v{231+2*i}')
        a(f'v_lshlrev_b32 v{230+2*i}, 16, v{201+i}')
        a(f'v_and_b32 v{231+2*i}, 0xffff0000, v{201+i}')
        a(f'v_mul_f32 v{230+2*i}, v{230+2*i}, v243')
        a(f'v_mul_f32 v{231+2*i}, v{231+2*i}, v243')
        a(f'v_cvt_pk_bf16_f32 v{201+i}, v{230+2*i}, v{231+2*i}')
    srd(a, 44, 36, 37, 2048*1280)
    for i in range(5):
        a(f'buffer_store_dword v{201+i}, v200, s[44:47], s41 offen offset:{i*256}')
    srd_off(a, 48, 36, 37, WS_CNT, 64*256)
    a('s_lshl_b32 s42, s40, 8')
    a('v_mov_b32 v208, 0')
    a('buffer_store_dword v208, v200, s[48:51], s42 offen')
    a(f's_and_b32 s3, s{S_WAVE}, 2')
    a('s_cmp_eq_u32 s3, 0')
    csel(a, 's38', WS_KF, WS_VF)
    a(f's_lshl_b32 s39, s{S_HEAD}, 19')
    a('s_add_u32 s38, s38, s39')
    srd_off(a, 44, 36, 37, 's38', 512*1024)
    zero_regs(a, ACC, 128)
    stamp(a)
    a('s_waitcnt vmcnt(17)')
    a('s_barrier')
    stamp(a)
    n0 = _nst[0]
    a(f's_and_b32 s3, s{S_WAVE}, 2')
    a('s_cmp_eq_u32 s3, 0')
    a('s_cbranch_scc0 K1_V')
    for isv in (0, 1):
        if isv: a.label('K1_V')
        _nst[0] = n0
        gemm_main(a, 8, bool(isv), f'K1_G{isv}')
        stamp(a)
        a(f'v_lshlrev_b32 v{VT}, 4, v{VL}')
        a(f's_lshr_b32 s3, s{S_WAVE}, 2')
        a(f's_lshl_b32 s4, s{S_MT}, 1')
        a('s_add_u32 s3, s3, s4')
        a('s_lshl_b32 s3, s3, 15')
        a(f's_and_b32 s4, s{S_WAVE}, 1')
        a(f's_lshl_b32 s4, s4, {11 if isv else 12}')
        a('s_add_u32 s3, s3, s4')
        a('s_waitcnt lgkmcnt(0)')
        a('s_nop 4')
        k = 0
        for rt in range(4):
            for ct in range(2):
                for hf in range(2):
                    src = ACC + (rt*2+ct)*16 + hf*8
                    dst = 128 + (k % 8) * 4; k += 1
                    for j in range(4):
                        a(f'v_cvt_pk_bf16_f32 v{dst+j}, v{src+2*j}, v{src+2*j+1}')
                    off = (hf*4096 + ct*1024) if isv else (ct*2 + hf)*1024
                    if off >= 4096:
                        a('s_add_u32 s4, s3, 4096'); so = 's4'; off -= 4096
                    else: so = 's3'
                    a(f'buffer_store_dwordx4 v[{dst}:{dst+3}], v{VT}, s[44:47], {so} offen offset:{off}{SC}')
            a('s_add_u32 s3, s3, 8192')
        stamp_flush(a)
        a('s_endpgm')
    a.label('K1_DONE')
    a('s_endpgm')

import struct
def f32(x):
    return struct.unpack('<I', struct.pack('<f', x))[0]
```

```python
from gen1 import *
import math

O = 0; S = [64, 96]; NEGM = 128; Q = 144; P = 176; FR = 192
VKV, VDMA, M, L, L2, QQ, T0, VST, VLN, TMAX = 240, 241, 242, 243, 244, 245, 246, 252, 253, 254
NFR = 8
S_KS, S_VS, S_AS = 44, 48, 52
S_N, S_NA, S_NA1, S_KOFF, S_VOFF, S_G16, S_M0K, S_RET, S_THR, S_G, S_R, S_QB = 56, 57, 58, 59, 60, 61, 62, 63, 64, 65, 66, 67
S_NEGBIG = 68
QB_LDS = 131072
DIST = 6

def kread(i, slot):
    f = FR + (i % NFR) * 4
    return f'ds_read_b128 v[{f}:{f+3}], v{VKV} offset:{slot*16384 + i*1024}'
def vread(i, slot):
    f = FR + (i % NFR) * 4
    return f'ds_read_b128 v[{f}:{f+3}], v{VKV} offset:{32768 + slot*16384 + i*1024}'
def qk_mfma(i, sn):
    sub, ds = i >> 3, i & 7
    f = FR + (i % NFR) * 4
    d = sn + sub * 16
    c = f'v[{NEGM}:{NEGM+15}]' if ds == 0 else f'v[{d}:{d+15}]'
    return f'v_mfma_f32_32x32x16_bf16 v[{d}:{d+15}], v[{f}:{f+3}], v[{Q+ds*4}:{Q+ds*4+3}], {c}'
def pv_mfma(i):
    ks, dt = i >> 2, i & 3
    f = FR + (i % NFR) * 4
    d = O + dt * 16
    return f'v_mfma_f32_32x32x16_bf16 v[{d}:{d+15}], v[{f}:{f+3}], v[{P+ks*4}:{P+ks*4+3}], v[{d}:{d+15}]'

def sm_group(sc, ks):
    b = sc + ks * 8
    Ls = []
    Ls.append(f'v_exp_f32 v{b}, v{b}')
    Ls.append(f'v_exp_f32 v{b+1}, v{b+1}')
    for j in range(4):
        if j < 3:
            Ls.append(f'v_exp_f32 v{b+2*j+2}, v{b+2*j+2}')
        Ls.append(f'v_add_f32 v{L}, v{L}, v{b+2*j}')
        if j < 3:
            Ls.append(f'v_exp_f32 v{b+2*j+3}, v{b+2*j+3}')
        else:
            Ls.append(f'v_cvt_pk_bf16_f32 v{P+ks*4+2}, v{b+4}, v{b+5}')
        Ls.append(f'v_add_f32 v{L2}, v{L2}, v{b+2*j+1}')
        if j != 2:
            Ls.append(f'v_cvt_pk_bf16_f32 v{P+ks*4+j}, v{b+2*j}, v{b+2*j+1}')
    return Ls

def max_tree(sn):
    Ls = []
    t = [TMAX, T0]
    for c in range(2):
        b = sn + c * 16
        Ls.append(f'v_max3_f32 v{t[c]}, v{b}, v{b+1}, v{b+2}')
    for j in range(6):
        for c in range(2):
            b = sn + c * 16
            Ls.append(f'v_max3_f32 v{t[c]}, v{t[c]}, v{b+3+2*j}, v{b+4+2*j}')
    Ls.append(f'v_max3_f32 v{TMAX}, v{TMAX}, v{sn+15}, v{sn+31}')
    Ls.append(f'v_max_f32 v{TMAX}, v{TMAX}, v{T0}')
    return Ls

def kv_dma(a, isv, slot):
    off = S_VOFF if isv else S_KOFF
    sr = S_VS if isv else S_KS
    a(f's_add_u32 m0, s{S_M0K}, {(32768 if isv else 0) + slot*16384}')
    a('s_nop 0')
    for i in range(4):
        a(f'buffer_load_dwordx4 v{VDMA}, s[{sr}:{sr+3}], s{off} offen offset:{i*1024} lds')
    a(f's_add_u32 s{off}, s{off}, 32768')

def cross_max(a):
    a(f'v_mov_b32 v{T0}, v{TMAX}')
    a('s_nop 1')
    a(f'v_permlane32_swap_b32 v{TMAX}, v{T0}')
    a(f'v_max_f32 v{TMAX}, v{TMAX}, v{T0}')

def init_path(a, sn):
    cross_max(a)
    a(f'v_max_f32 v{M}, s{S_NEGBIG}, v{TMAX}')
    for i in range(32): a(f'v_sub_f32 v{sn+i}, v{sn+i}, v{M}')
    for i in range(16): a(f'v_sub_f32 v{NEGM+i}, 0, v{M}')

def mask_block(a, sn):
    a(f'v_mov_b32 v{T0+1}, 0xff800000')
    for base in range(0, 32, 4):
        for j in range(4):
            r = base + j
            c = 32*(r >> 4) + 16*((r >> 3) & 1) + (r & 7)
            a(f'v_cmp_gt_i32 s[{70+2*j}:{71+2*j}], {c}, v{QQ}')
        for j in range(4):
            r = base + j
            if j == 0: a('s_nop 0')
            a(f'v_cndmask_b32 v{sn+r}, v{sn+r}, v{T0+1}, s[{70+2*j}:{71+2*j}]')

def emit_mix(a, items):
    for it in items: a(it)

def kv_dma_list(isv, slot):
    off = S_VOFF if isv else S_KOFF
    sr = S_VS if isv else S_KS
    return [f'buffer_load_dwordx4 v{VDMA}, s[{sr}:{sr+3}], s{off} offen offset:{i*1024} lds' for i in range(4)]

def iteration(a, par):
    sc, sn = S[par], S[par ^ 1]
    reads = [kread(i, par ^ 1) for i in range(16)] + [vread(i, par) for i in range(16)] + [kread(i, par) for i in range(DIST)]
    mf = [qk_mfma(i, sn) for i in range(16)] + [pv_mfma(i) for i in range(16)]
    fill = [[] for _ in range(32)]
    g = [sm_group(sc, ks) for ks in range(4)]
    v1 = g[0] + g[1] + g[2]
    for i in range(16):
        fill[i] += v1[len(v1) * i // 16: len(v1) * (i + 1) // 16]
    for i in range(6):
        fill[16 + i] += g[3][len(g[3]) * i // 6: len(g[3]) * (i + 1) // 6]
    fill[22] += [f's_add_u32 s3, s{S_N}, 1', f's_cmp_eq_u32 s3, s{S_NA}', f's_cbranch_scc1 MASK{par}']
    if par == 1:
        fill[22] += [f's_cmp_eq_u32 s{S_N}, 15', f's_cbranch_scc1 MASK{par}']
    fill[22] += [f'MASK_RET{par}:']
    mt = max_tree(sn)
    for i in range(8):
        fill[23 + i] += mt[len(mt) * i // 8: len(mt) * (i + 1) // 8]
    fill[31] += [f'v_cmp_lt_f32 vcc, s{S_THR}, v{TMAX}']
    VG = [1, 3, 5, 7]; KG = [12, 15, 18, 21]
    fill[0] = [f's_cmp_eq_u32 s{S_N}, s{S_NA}', f's_cselect_b32 s{S_VOFF}, s{S_G16}, s{S_VOFF}',
               f's_add_u32 m0, s{S_M0K}, {32768 + (par^1)*16384}'] + fill[0]
    for gi, x in zip(VG, kv_dma_list(True, par ^ 1)): fill[gi].append(x)
    fill[8] += [f's_add_u32 s{S_VOFF}, s{S_VOFF}, 32768', f's_add_u32 s3, s{S_N}, 2']
    fill[9] += [f's_cmp_eq_u32 s3, s{S_NA}', f's_cselect_b32 s{S_KOFF}, s{S_G16}, s{S_KOFF}']
    fill[11] += [f's_cmp_ge_u32 s{S_N}, 14', f's_cselect_b32 s{S_KS+2}, 0, s{S_KS+2}', f's_add_u32 m0, s{S_M0K}, {(par^1)*16384}']
    for gi, x in zip(KG, kv_dma_list(False, par ^ 1)): fill[gi].append(x)
    fill[22] = [f's_add_u32 s{S_KOFF}, s{S_KOFF}, 32768'] + fill[22]
    done = -1
    for i in range(32):
        if i > done:
            a(f's_waitcnt lgkmcnt({(i + DIST) - (i + 1)})')
        a(mf[i])
        r = i + DIST
        if r == 16 or r == 32:
            a('s_waitcnt vmcnt(8) lgkmcnt(0)')
            a('s_barrier')
            done = r - 1
        a(reads[r])
        for x in fill[i]:
            if x.endswith(':'): a.label(x[:-1])
            else: a(x)
    a(f's_cmp_eq_u32 s{S_N}, s{S_NA}')
    a(f's_cbranch_scc1 BOUND{par}')
    a(f's_cbranch_vccnz RESC{par}')
    a.label(f'IT_RET{par}')
    a(f's_add_u32 s{S_N}, s{S_N}, 1')
    a(f's_cmp_eq_u32 s{S_N}, s{S_NA}')
    a(f's_cbranch_scc1 QSWAP{par}')
    a.label(f'QSWAP_RET{par}')

def tail_iteration(a):
    sc = S[0]
    a('s_waitcnt vmcnt(0) lgkmcnt(0)')
    a('s_barrier')
    reads = [vread(i, 0) for i in range(16)]
    mf = [pv_mfma(i) for i in range(16)]
    for i in range(DIST): a(reads[i])
    g = [sm_group(sc, ks) for ks in range(4)]
    fill = [[] for _ in range(16)]
    for k in range(3):
        gg = g[k + 1]
        for i in range(3): fill[k * 4 + i] += gg[len(gg) * i // 3: len(gg) * (i + 1) // 3]
        fill[k * 4 + 3] += ['s_nop 0']
    for x in g[0] + ['s_nop 0']: a(x)
    for i in range(16):
        a(f's_waitcnt lgkmcnt({min(16, i + DIST) - (i + 1)})')
        a(mf[i])
        if i + DIST < 16: a(reads[i + DIST])
        for x in fill[i]: a(x)
    a('s_barrier')

RCV = [P + i for i in range(16)] + [224 + i for i in range(16)]
def merge(a, g):
    keep = O + (32 if g else 0); send = O + (0 if g else 32)
    t = T0
    a.label(f'MERGE{g}')
    for j in range(8):
        a(f'ds_write_b128 v{t+2}, v[{send+4*j}:{send+4*j+3}] offset:{j*1024}')
    a(f'v_max_f32 v{t}, v{M}, v{t+4}')
    a(f'v_sub_f32 v{t+1}, v{M}, v{t}')
    a(f'v_sub_f32 v{t+4}, v{t+4}, v{t}')
    a(f'v_exp_f32 v{t+1}, v{t+1}')
    a(f'v_exp_f32 v{t+4}, v{t+4}')
    a(f'v_xor_b32 v{t+2}, s5, v{t+2}')
    a(f'v_mul_f32 v{L}, v{L}, v{t+1}')
    a(f'v_fmac_f32 v{L}, v{t+5}, v{t+4}')
    a(f'v_rcp_f32 v{L}, v{L}')
    a('s_waitcnt lgkmcnt(0)')
    a('s_barrier')
    for j in range(8):
        a(f'ds_read_b128 v[{RCV[4*j]}:{RCV[4*j]+3}], v{t+2} offset:{j*1024}')
    a(f'v_mul_f32 v{t+1}, v{t+1}, v{L}')
    a(f'v_mul_f32 v{t+4}, v{t+4}, v{L}')
    for i in range(32): a(f'v_mul_f32 v{keep+i}, v{keep+i}, v{t+1}')
    a(f's_lshl_b32 s3, s{S_QB}, 3')
    a(f's_lshl_b32 s4, s{S_R}, 1')
    a('s_add_u32 s3, s3, s4')
    a(f's_mul_i32 s3, s3, {NKS}')
    a(f's_lshl_b32 s4, s{S_HEAD}, 2')
    a('s_add_u32 s3, s3, s4')
    a(f's_add_u32 s3, s3, {2*g}')
    a('s_lshl_b32 s3, s3, 10')
    for q in range(4):
        a(f's_waitcnt lgkmcnt({6 - 2*q})')
        if q == 3: a('s_barrier')
        for i in range(8): a(f'v_fmac_f32 v{keep+q*8+i}, v{RCV[q*8+i]}, v{t+4}')
        for j in range(4): a(f'v_cvt_pk_bf16_f32 v{send+q*4+j}, v{keep+q*8+2*j}, v{keep+q*8+2*j+1}')
        a(f'buffer_store_dwordx4 v[{send+q*4}:{send+q*4+3}], v{VST}, s[{S_AS}:{S_AS+3}], s3 offen offset:{q*512}{SC}')
    a('s_nop 0')
    a('s_branch MERGE_RET')

def merge_call(a, par, ret):
    t = T0
    a(f's_mov_b32 s{S_RET}, {ret}')
    a(f's_and_b32 s3, s{S_R}, 1')
    a('s_lshl_b32 s3, s3, 13')
    a(f's_cmp_lt_u32 s{S_R}, 2')
    csel(a, 's4', QB_LDS, 32768 + par*16384)
    csel(a, 's5', 16384, 65536)
    a('s_add_u32 s3, s3, s4')
    a(f's_mul_i32 s4, s5, s{S_G}')
    a('s_add_u32 s3, s3, s4')
    a(f'v_add_f32 v{L}, v{L}, v{L2}')
    a(f'v_mov_b32 v{t}, v{L}')
    a(f'v_lshl_add_u32 v{t+2}, v{VLN}, 4, s3')
    a(f'v_xor_b32 v{t+3}, s5, v{t+2}')
    a(f'v_permlane32_swap_b32 v{L}, v{t}')
    a(f'v_add_f32 v{L}, v{L}, v{t}')
    a(f'ds_write_b64 v{t+3}, v[{M}:{L}]')
    a('s_waitcnt lgkmcnt(0)')
    a('s_barrier')
    a(f'ds_read_b64 v[{t+4}:{t+5}], v{t+2}')
    a(f's_cmp_eq_u32 s{S_G}, 0')
    a('s_waitcnt lgkmcnt(0)')
    a('s_cbranch_scc1 MERGE0')
    a('s_branch MERGE1')

def k2(a):
    a.raw('.p2align 8'); a.raw('.globl k2_kernel'); a.raw('.type k2_kernel,@function')
    a.label('k2_kernel')
    common_ids(a, 'K2_DONE')
    stamp_reset(); stamp(a)
    a('s_load_dwordx2 s[28:29], s[0:1], 16')
    a('s_load_dwordx4 s[32:35], s[0:1], 56')
    a('s_load_dwordx2 s[36:37], s[0:1], 96')
    a(f'v_mov_b32 v{VLN}, v{VL}')
    a(f's_lshr_b32 s{S_G}, s{S_WAVE}, 2')
    a(f's_and_b32 s{S_R}, s{S_WAVE}, 3')
    a(f's_sub_u32 s{S_NA}, 15, s{S_MT}')
    a(f's_add_u32 s{S_NA1}, s{S_NA}, 1')
    gemm_lds_addrs(a, False)
    a(f's_lshl_b32 s3, s{S_R}, 13')
    a(f's_and_b32 s4, s{S_R}, 1')
    a('s_lshl_b32 s4, s4, 6')
    a(f's_cmp_lt_u32 s{S_R}, 2')
    a('s_cselect_b32 s3, s3, 0x4000')
    a('s_cselect_b32 s4, 0, s4')
    a('s_cselect_b32 s5, 64, 0x2000')
    a('s_add_u32 s3, s3, 0x10000')
    a(f'v_xor_b32 v{WA}, s4, v{VT+4}')
    a(f'v_add_u32 v{WA}, s3, v{WA}')
    a(f'v_xor_b32 v{WA+1}, s5, v{WA}')
    a(f's_cmp_lt_u32 s{S_WAVE}, 4')
    a(f's_cselect_b32 s5, s{S_NA}, s{S_MT}')
    csel(a, 's6', 8192, 3456)
    a('s_lshl_b32 s5, s5, 7')
    a(f's_lshl_b32 s7, s{S_R}, 5')
    a('s_add_u32 s5, s5, s7')
    a(f's_bfe_u32 s7, s{S_WAVE}, 0x10001')
    a('s_lshl_b32 s7, s7, 7')
    a(f's_lshl_b32 s38, s{S_HEAD}, 8')
    a('s_add_u32 s7, s7, s38')
    a(f's_lshl_b32 s38, s{S_HEAD}, 7')
    a(f's_cmp_lt_u32 s{S_WAVE}, 4')
    a('s_cselect_b32 s7, s7, s38')
    gemm_dma_voffs(a, 1280, 's5', 's6', 's7')
    a('s_waitcnt lgkmcnt(0)')
    srd(a, S_XS, 36, 37, 2048*1280)
    a(f's_cmp_lt_u32 s{S_WAVE}, 6')
    a('s_cselect_b32 s38, s32, s34')
    a('s_cselect_b32 s39, s33, s35')
    a(f's_cmp_lt_u32 s{S_HEAD}, 27')
    a(f's_cselect_b32 s40, {640*3456}, 0')
    a(f's_cmp_lt_u32 s{S_WAVE}, 4')
    a('s_cselect_b32 s38, s28, s38')
    a('s_cselect_b32 s39, s29, s39')
    a(f's_cselect_b32 s40, {640*8192}, s40')
    srd(a, S_WS, 38, 39, 's40')
    for l in gemm_dma(0): a(l)
    emit_dma(a, gemm_dma_x(1))
    a(f's_lshl_b32 s39, s{S_HEAD}, 19')
    a(f's_add_u32 s38, s39, {WS_KF}')
    srd_off(a, S_KS, 36, 37, 's38', 512*1024)
    a(f's_add_u32 s38, s39, {WS_VF}')
    srd_off(a, S_VS, 36, 37, 's38', 512*1024)
    srd_off(a, S_AS, 36, 37, WS_A3, 128*A3_MT)
    a(f's_lshl_b32 s{S_G16}, s{S_G}, 14')
    a(f's_mov_b32 s{S_KOFF}, s{S_G16}')
    a(f's_mov_b32 s{S_VOFF}, s{S_G16}')
    a(f's_lshl_b32 s3, s{S_G}, 16')
    a(f's_lshl_b32 s4, s{S_R}, 12')
    a(f's_add_u32 s{S_M0K}, s3, s4')
    a(f'v_lshl_add_u32 v{VKV}, v{VLN}, 4, s3')
    a(f'v_lshl_add_u32 v{VDMA}, v{VLN}, 4, s4')
    a(f's_mov_b32 s{S_THR}, 0x41000000')
    a(f's_mov_b32 s{S_NEGBIG}, {hex(f32(-1e30))}')
    a(f's_mov_b32 s{S_N}, 0')
    a(f's_mov_b32 s{S_QB}, s{S_NA}')
    a(f'v_and_b32 v{QQ}, 31, v{VLN}')
    a(f'v_lshrrev_b32 v{T0}, 5, v{VLN}')
    a(f'v_lshlrev_b32 v{T0+1}, 3, v{T0}')
    a(f'v_sub_u32 v{QQ}, v{QQ}, v{T0+1}')
    a(f's_lshl_b32 s3, s{S_R}, 5')
    a(f's_lshl_b32 s4, s{S_G}, 6')
    a('s_sub_u32 s3, s3, s4')
    a(f'v_add_u32 v{QQ}, s3, v{QQ}')
    a(f'v_bfe_u32 v{T0+1}, v{VLN}, 4, 1')
    a(f'v_mul_u32_u24 v{VST}, {A3_MT}, v{T0+1}')
    a(f'v_lshl_add_u32 v{VST}, v{T0}, 8, v{VST}')
    a(f'v_and_b32 v{T0+1}, 15, v{VLN}')
    a(f'v_lshl_add_u32 v{VST}, v{T0+1}, 4, v{VST}')
    zero_regs(a, ACC, 128)
    a('s_waitcnt vmcnt(4)')
    a('s_barrier')
    stamp(a)
    gemm_main(a, 10, False, 'K2_G')
    stamp(a)
    a('s_waitcnt vmcnt(0) lgkmcnt(0)')
    a('s_barrier')
    kv_dma(a, False, 0)
    kv_dma(a, False, 1)
    kv_dma(a, True, 0)
    a(f's_cmp_lt_u32 s{S_R}, 2')
    a('s_cbranch_scc0 K2_GU')
    a(f's_mov_b32 s5, {hex(f32(math.log2(math.e) / math.sqrt(128)))}')
    a(f's_lshl_b32 s3, s{S_R}, 12')
    a(f's_cmp_eq_u32 s{S_G}, 0')
    csel(a, 's4', 49152, QB_LDS)
    csel(a, 's6', 65536, 16384)
    a('s_add_u32 s3, s3, s4')
    a(f'v_lshl_add_u32 v{T0}, v{VLN}, 4, s3')
    a(f'v_add_u32 v{T0+1}, s6, v{T0}')
    k = 0
    for rt in range(4):
        for ct in range(2):
            for hf in range(2):
                src = ACC + (rt*2+ct)*16 + hf*8
                dst = 128 + (k % 8) * 4; k += 1
                for j in range(8): a(f'v_mul_f32 v{src+j}, s5, v{src+j}')
                for j in range(4): a(f'v_cvt_pk_bf16_f32 v{dst+j}, v{src+2*j}, v{src+2*j+1}')
                a(f'ds_write_b128 v{T0 + (rt >> 1)}, v[{dst}:{dst+3}] offset:{(rt&1)*8192 + (2*ct+hf)*1024}')
    a('s_branch K2_ATT')
    a.label('K2_GU')
    a(f's_cmp_ge_u32 s{S_HEAD}, 27')
    a('s_cbranch_scc1 K2_ATT')
    a(f's_cmp_eq_u32 s{S_G}, 0')
    a(f's_cselect_b32 s3, s{S_NA}, s{S_MT}')
    a(f's_mul_i32 s3, s3, {8*NKS}')
    a(f's_lshl_b32 s4, s{S_HEAD}, 1')
    a('s_add_u32 s3, s3, s4')
    a(f's_and_b32 s4, s{S_R}, 1')
    a('s_add_u32 s3, s3, s4')
    a('s_add_u32 s3, s3, 128')
    a('s_lshl_b32 s3, s3, 10')
    k = 0
    for rt in range(4):
        for hf in range(2):
            gs = ACC + (rt*2)*16 + hf*8; us = gs + 16
            dst = 128 + (k % 8) * 4; k += 1
            for j in range(8):
                a(f'v_max_f32 v{gs+j}, 0, v{gs+j}')
                a(f'v_mul_f32 v{gs+j}, v{gs+j}, v{us+j}')
            for j in range(4): a(f'v_cvt_pk_bf16_f32 v{dst+j}, v{gs+2*j}, v{gs+2*j+1}')
            a(f'buffer_store_dwordx4 v[{dst}:{dst+3}], v{VST}, s[{S_AS}:{S_AS+3}], s3 offen offset:{hf*512}{SC}')
        a(f's_add_u32 s3, s3, {2*A3_MT}')
    a.label('K2_ATT')
    a('s_waitcnt vmcnt(0) lgkmcnt(0)')
    a('s_barrier')
    a(f's_lshr_b32 s3, s{S_R}, 1')
    a('s_lshl_b32 s3, s3, 16')
    a(f's_and_b32 s4, s{S_R}, 1')
    a('s_lshl_b32 s4, s4, 13')
    a('s_add_u32 s3, s3, s4')
    a('s_add_u32 s3, s3, 49152')
    a(f'v_lshl_add_u32 v{T0}, v{VLN}, 4, s3')
    for ds in range(8): a(f'ds_read_b128 v[{Q+ds*4}:{Q+ds*4+3}], v{T0} offset:{ds*1024}')
    zero_regs(a, O, 64)
    zero_regs(a, NEGM, 16)
    a(f'v_mov_b32 v{L}, 0'); a(f'v_mov_b32 v{L2}, 0')
    for i in range(DIST): a(kread(i, 0))
    for i in range(16):
        a(f's_waitcnt lgkmcnt({min(16, i + DIST) - (i + 1)})')
        a(qk_mfma(i, S[0]))
        if i + DIST < 16: a(kread(i + DIST, 0))
    a('s_barrier')
    kv_dma(a, False, 0)
    for i in range(DIST): a(kread(i, 1))
    for x in max_tree(S[0]): a(x)
    init_path(a, S[0])
    stamp(a)
    a.label('K2_LOOP')
    iteration(a, 0)
    iteration(a, 1)
    a(f's_cmp_lt_u32 s{S_N}, 16')
    a('s_cbranch_scc1 K2_LOOP')
    stamp(a)
    tail_iteration(a)
    stamp(a)
    merge_call(a, 0, 2)
    for par in range(2):
        sn = S[par ^ 1]
        a.label(f'QSWAP{par}')
        a(f's_lshl_b32 s3, s{S_R}, 13')
        a(f's_add_u32 s3, s3, {QB_LDS}')
        a(f'v_lshl_add_u32 v{T0}, v{VLN}, 4, s3')
        for ds in range(8): a(f'ds_read_b128 v[{Q+ds*4}:{Q+ds*4+3}], v{T0} offset:{ds*1024}')
        zero_regs(a, NEGM, 16)
        a('s_waitcnt lgkmcnt(0)')
        a(f's_branch QSWAP_RET{par}')
        a.label(f'MASK{par}')
        a('s_nop 7')
        mask_block(a, sn)
        a(f's_branch MASK_RET{par}')
        a.label(f'RESC{par}')
        cross_max(a)
        a(f'v_max_f32 v{TMAX}, 0, v{TMAX}')
        a(f'v_add_f32 v{M}, v{M}, v{TMAX}')
        a(f'v_exp_f32 v{T0}, -v{TMAX}')
        for i in range(32): a(f'v_sub_f32 v{sn+i}, v{sn+i}, v{TMAX}')
        for i in range(16): a(f'v_sub_f32 v{NEGM+i}, 0, v{M}')
        a(f'v_mul_f32 v{L}, v{L}, v{T0}')
        a(f'v_mul_f32 v{L2}, v{L2}, v{T0}')
        for i in range(64): a(f'v_mul_f32 v{O+i}, v{O+i}, v{T0}')
        a(f's_branch IT_RET{par}')
        a.label(f'BOUND{par}')
        merge_call(a, par, par)
        a.label(f'BOUND_RET{par}')
        zero_regs(a, O, 64)
        a(f'v_mov_b32 v{L}, 0'); a(f'v_mov_b32 v{L2}, 0')
        a(f's_mov_b32 s{S_QB}, s{S_MT}')
        init_path(a, sn)
        a(f's_branch IT_RET{par}')
    merge(a, 0)
    merge(a, 1)
    a.label('MERGE_RET')
    a(f's_cmp_eq_u32 s{S_RET}, 0')
    a('s_cbranch_scc1 BOUND_RET0')
    a(f's_cmp_eq_u32 s{S_RET}, 1')
    a('s_cbranch_scc1 BOUND_RET1')
    stamp_flush(a)
    a.label('K2_DONE')
    a('s_endpgm')
```

```python
from gen2 import *

WS_PART = 0x3C00000
def k3(a):
    STG = 36864; WOFF = 16384
    ACC3 = 0; AF = 40; WFr = 56; DV = 100; VAR, VWA, VWB = 106, 107, 108; CA, CWA, CWB = 109, 110, 111
    VL3 = 112; TT = 114; PB = 128; TA, TWW = 98, 99; TS = int(os.environ.get('TS', 6))
    S_SPL, S_MTL, S_NTL, S_KS3, S_END, S_SOFF, S_STEP, S_LB, S_RD, S_WR = 24, 25, 26, 27, 28, 29, 30, 31, 32, 33
    a.raw('.p2align 8'); a.raw('.globl k3_kernel'); a.raw('.type k3_kernel,@function')
    a.label('k3_kernel')
    a('s_cmp_ge_u32 s2, 256')
    a('s_cbranch_scc1 K3_DONE')
    a('s_load_dwordx2 s[36:37], s[0:1], 96')
    a('s_load_dwordx2 s[38:39], s[0:1], 40')
    a('s_load_dwordx4 s[40:43], s[0:1], 72')
    a('s_load_dwordx2 s[44:45], s[0:1], 0')
    a(f'v_and_b32 v{VL3}, 63, v0')
    a(f'v_lshrrev_b32 v{TT}, 6, v0')
    a(f's_bfe_u32 s{S_SPL}, s2, 0x20001')
    a(f'v_readfirstlane_b32 s{S_WAVE}, v{TT}')
    a('s_and_b32 s3, s2, 1')
    a('s_lshl_b32 s3, s3, 3')
    a(f's_bfe_u32 s{S_MTL}, s2, 0x30003')
    a(f's_add_u32 s{S_MTL}, s{S_MTL}, s3')
    a(f's_lshr_b32 s{S_NTL}, s2, 6')
    a(f's_mul_i32 s{S_KS3}, s{S_SPL}, 23')
    a(f's_add_u32 s{S_END}, s{S_KS3}, 23')
    a(f's_min_u32 s{S_END}, s{S_END}, 91')
    stamp_reset(); stamp(a)
    a(f's_and_b32 s4, s{S_WAVE}, 3')
    a(f's_cmp_lt_u32 s{S_WAVE}, 4')
    a('s_cbranch_scc0 K3_ASET')
    for i in range(5):
        a(f'v_add_u32 v{TT}, {i*64}, v{VL3}')
        a(f'v_mul_u32_u24 v{TT+1}, 3277, v{TT}')
        a(f'v_lshrrev_b32 v{TT+1}, 16, v{TT+1}')
        a(f'v_mul_u32_u24 v{TT+2}, 20, v{TT+1}')
        a(f'v_sub_u32 v{TT}, v{TT}, v{TT+2}')
        a(f'v_lshrrev_b32 v{TT+2}, 2, v{TT+1}')
        a(f'v_and_b32 v{TT+2}, 2, v{TT+2}')
        a(f'v_xor_b32 v{TT}, v{TT}, v{TT+2}')
        a(f'v_mul_u32_u24 v{TT+1}, 1280, v{TT+1}')
        a(f'v_lshl_add_u32 v{DV+i}, v{TT}, 4, v{TT+1}')
        if 0 < i < 4: a(f'v_subrev_u32 v{DV+i}, {i*1024}, v{DV+i}')
    a(f's_mul_i32 s{S_LB}, s4, 5120')
    a(f's_add_u32 s{S_LB}, s{S_LB}, {WOFF}')
    a(f's_mov_b32 s{S_STEP}, {0 if os.environ.get("EXPW") else 64*1280}')
    a(f's_mul_i32 s5, s4, {16*1280}')
    a(f's_mul_i32 s6, s{S_NTL}, 320')
    a('s_add_u32 s34, s5, s6')
    a(f's_cmp_lt_u32 s{S_KS3}, 64')
    a('s_cselect_b32 s5, 0, 64')
    a(f's_sub_u32 s5, s{S_KS3}, s5')
    a(f's_mul_i32 s5, s5, {64*1280}')
    a(f's_add_u32 s{S_SOFF}, s5, s34')
    a('s_waitcnt lgkmcnt(0)')
    a(f's_cmp_lt_u32 s{S_KS3}, 64')
    a('s_cselect_b32 s6, s38, s40')
    a('s_cselect_b32 s7, s39, s41')
    csel(a, 's5', 4096*1280, 1728*1280)
    srd(a, 8, 6, 7, 's5')
    a('s_branch K3_SETDONE')
    a.label('K3_ASET')
    a(f'v_lshlrev_b32 v{DV}, 4, v{VL3}')
    a(f'v_mov_b32 v{DV+1}, v{DV}')
    a(f'v_add_u32 v{DV+2}, {A3_MT - 2048}, v{DV}')
    a(f'v_mov_b32 v{DV+3}, v{DV+2}')
    a(f's_lshl_b32 s{S_LB}, s4, 12')
    a(f's_mov_b32 s{S_STEP}, {0 if os.environ.get("EXPA") else 2048}')
    a(f's_lshl_b32 s5, s{S_MTL}, 2')
    a('s_add_u32 s5, s5, s4')
    a(f's_mul_i32 s5, s5, {NKS}')
    a(f's_add_u32 s5, s5, s{S_KS3}')
    a(f's_lshl_b32 s{S_SOFF}, s5, 11')
    a('s_mov_b32 s34, 0')
    a('s_waitcnt lgkmcnt(0)')
    srd_off(a, 8, 36, 37, WS_A3, 128*A3_MT)
    a(f'v_mov_b32 v{DV+4}, v{DV}')
    a.label('K3_SETDONE')
    if os.environ.get('EXP2'): a(f's_mov_b32 s{S_STEP}, 0')
    a(f's_mov_b32 s{S_WR}, 0')
    a(f's_mov_b32 s{S_RD}, 0')
    a(f's_mov_b32 s35, s{S_KS3}')
    class B(list):
        def __call__(self, t): self.append(t)
        def label(self, t): self.append(t + ':')
    def touch_batch(a):
        a(f's_lshl_b32 s5, s{S_MTL}, 2')
        a(f's_add_u32 s5, s5, s{S_NTL}')
        a('s_lshl_b32 s5, s5, 1')
        a(f's_and_b32 s6, s{S_WAVE}, 1')
        a('s_add_u32 s5, s5, s6')
        a(f's_mul_i32 s5, s5, {NKS//2}')
        a('s_add_u32 s5, s5, s62')
        a(f's_lshr_b32 s6, s{S_WAVE}, 1')
        a('s_mul_i32 s6, s6, 3')
        a('s_add_u32 s5, s5, s6')
        a('s_lshl_b32 s5, s5, 11')
        srd_off(a, 56, 36, 37, WS_A3, 128*A3_MT)
        a(f'buffer_load_dword v{TT+12}, v{TA}, s[56:59], s5 offen')
        if TS == 6: a(f'buffer_load_dword v{TT+12}, v{TA}, s[56:59], s5 offen offset:2048')
        a(f's_and_b32 s5, s{S_MTL}, 7')
        a('s_lshl_b32 s5, s5, 3')
        a(f's_add_u32 s5, s5, s{S_WAVE}')
        a('s_mul_i32 s5, s5, 12')
        a('s_lshl_b32 s6, s62, 6')
        a('s_add_u32 s5, s5, s6')
        a('s_cmp_lt_u32 s5, 4096')
        a('s_cselect_b32 s6, s38, s40')
        a('s_cselect_b32 s7, s39, s41')
        csel(a, 's60', 4096*1280, 1728*1280)
        a('s_cselect_b32 s61, 0, 4096')
        srd(a, 56, 6, 7, 's60')
        a('s_sub_u32 s5, s5, s61')
        a('s_mul_i32 s5, s5, 1280')
        a(f's_mul_i32 s6, s{S_NTL}, 320')
        a('s_add_u32 s5, s5, s6')
        a(f'buffer_load_dword v{TT+12}, v{TWW}, s[56:59], s5 offen')
    def dma_parts(lab, touch=True):
        h = B()
        h('s_cmp_eq_u32 s35, s49')
        h(f's_cbranch_scc0 {lab}a')
        srd(h, 8, 40, 41, 1728*1280)
        h(f's_mov_b32 s{S_SOFF}, s34')
        h.label(f'{lab}a')
        h(f's_cmp_ge_u32 s35, s{S_END}')
        h('s_cselect_b32 s10, 0, s10')
        h(f's_add_u32 m0, s{S_LB}, s{S_WR}')
        h('s_add_u32 s35, s35, 1')
        parts = [list(h)]
        for i in range(4):
            parts.append([f'buffer_load_dwordx4 v{DV+i}, s[8:11], s{S_SOFF} offen offset:{i*1024} lds'])
        p5 = [f's_cmp_lt_u32 s{S_WAVE}, 4', f's_cbranch_scc0 {lab}b', 's_add_u32 m0, m0, 4096', 's_nop 0',
              f'buffer_load_dwordx4 v{DV+4}, s[8:11], s{S_SOFF} offen lds']
        p5 += [f'{lab}b:']
        parts.append(p5)
        parts.append([f's_add_u32 s{S_SOFF}, s{S_SOFF}, s{S_STEP}', f's_add_u32 s{S_WR}, s{S_WR}, {STG}',
                      f's_cmp_eq_u32 s{S_WR}, {4*STG}', f's_cselect_b32 s{S_WR}, 0, s{S_WR}'])
        return parts
    def emit(a, part):
        for x in part:
            if x.endswith(':'): a.label(x[:-1])
            else: a(x)
    def dma(a, lab):
        for p in dma_parts(lab, False): emit(a, p)
    a(f's_cmp_lt_u32 s{S_WAVE}, 4')
    a('s_cselect_b32 s49, 64, -1')
    a('s_mov_b32 s48, 3')
    a.label('K3_PRE')
    dma(a, 'K3_P')
    a('s_sub_u32 s48, s48, 1')
    a('s_cmp_lg_u32 s48, 0')
    a('s_cbranch_scc1 K3_PRE')
    a(f'v_lshlrev_b32 v{TA}, {TS}, v{VL3}')
    a(f'v_mul_u32_u24 v{TT}, 52, v{VL3}')
    a(f'v_lshrrev_b32 v{TT}, 8, v{TT}')
    a(f'v_mul_u32_u24 v{TT+1}, 5, v{TT}')
    a(f'v_sub_u32 v{TT+1}, v{VL3}, v{TT+1}')
    a(f'v_min_u32 v{TT}, 11, v{TT}')
    a(f'v_mul_u32_u24 v{TT}, 1280, v{TT}')
    a(f'v_lshl_add_u32 v{TWW}, v{TT+1}, 6, v{TT}')
    a(f's_mov_b32 s62, s{S_KS3}')
    a(f's_add_u32 s63, s{S_KS3}, {int(os.environ.get("K3B", 6))}')
    a('s_mov_b32 s64, 0')
    a.label('K3_TB')
    touch_batch(a)
    a('s_add_u32 s62, s62, 12')
    a('s_cmp_eq_u32 s64, 1')
    a('s_cbranch_scc1 K3_LOOP')
    a('s_mov_b32 s64, 1')
    a(f's_and_b32 s4, s{S_WAVE}, 3')
    a('s_lshl_b32 s4, s4, 12')
    a(f'v_lshl_add_u32 v{VAR}, v{VL3}, 4, s4')
    a(f'v_lshrrev_b32 v{TT}, 4, v{VL3}')
    a(f'v_bfe_u32 v{TT+1}, v{VL3}, 2, 2')
    a(f'v_lshl_add_u32 v{TT+1}, v{TT}, 3, v{TT+1}')
    a(f'v_mul_u32_u24 v{TT+1}, 320, v{TT+1}')
    a(f'v_and_b32 v{TT+2}, 3, v{VL3}')
    a(f'v_lshl_add_u32 v{TT+1}, v{TT+2}, 3, v{TT+1}')
    a(f'v_and_b32 v{TT}, 1, v{TT}')
    a(f'v_lshlrev_b32 v{TT}, 5, v{TT}')
    a(f's_lshr_b32 s4, s{S_WAVE}, 2')
    a('s_mul_i32 s5, s4, 160')
    a(f's_add_u32 s5, s5, {WOFF}')
    a(f'v_add_u32 v{TT+1}, s5, v{TT+1}')
    a(f'v_add_u32 v{VWA}, v{TT+1}, v{TT}')
    a(f'v_sub_u32 v{VWB}, v{TT+1}, v{TT}')
    a('s_cmp_eq_u32 s4, 0')
    a('s_cbranch_scc1 K3_NOSW')
    a(f'v_swap_b32 v{VWA}, v{VWB}')
    a.label('K3_NOSW')
    zero_regs(a, ACC3, 40)
    stamp(a)
    a.label('K3_LOOP')
    a(f'v_add_u32 v{CA}, s{S_RD}, v{VAR}')
    a(f'v_add_u32 v{CWA}, s{S_RD}, v{VWA}')
    a(f'v_add_u32 v{CWB}, s{S_RD}, v{VWB}')
    a('s_waitcnt vmcnt(8)')
    a('s_barrier')
    reads = []; need = []
    for kk in range(2):
        for mt in range(2):
            f = AF + (kk*2+mt)*4
            reads.append(f'ds_read_b128 v[{f}:{f+3}], v{CA} offset:{mt*2048 + kk*1024}')
        for nt in range(5):
            f = WFr + (kk*5+nt)*4
            for u in range(2):
                reads.append(f'ds_read_b64_tr_b16 v[{f+2*u}:{f+2*u+1}], v{CWB if nt & 1 else CWA} offset:{nt*32 + (32*kk+4*u)*320}')
            need.append(len(reads))
    PRE = 12
    for r in reads[:PRE]: a(r)
    parts = dma_parts('K3_L')
    emit(a, parts[0])
    where = {0: 1, 2: 2, 4: 3, 6: 4, 8: 5, 9: 6}
    issued = PRE
    for kk in range(2):
        for nt in range(5):
            a(f's_waitcnt lgkmcnt({issued - need[kk*5+nt]})')
            for mt in range(2):
                d = ACC3 + (nt*2+mt)*4; fw = WFr + (kk*5+nt)*4; fa = AF + (kk*2+mt)*4
                a(f'v_mfma_f32_16x16x32_bf16 v[{d}:{d+3}], v[{fw}:{fw+3}], v[{fa}:{fa+3}], v[{d}:{d+3}]')
                for _ in range(2):
                    if issued < len(reads): a(reads[issued]); issued += 1
            if kk*5+nt in where: emit(a, parts[where[kk*5+nt]])
    a(f's_add_u32 s{S_RD}, s{S_RD}, {STG}')
    a(f's_cmp_eq_u32 s{S_RD}, {4*STG}')
    a(f's_cselect_b32 s{S_RD}, 0, s{S_RD}')
    a(f's_add_u32 s{S_KS3}, s{S_KS3}, 1')
    a(f's_cmp_eq_u32 s{S_KS3}, s63')
    a('s_cbranch_scc1 K3_TB')
    a(f's_cmp_lt_u32 s{S_KS3}, s{S_END}')
    a('s_cbranch_scc1 K3_LOOP')
    stamp(a)
    PS = 40960
    a(f's_lshl_b32 s4, s{S_MTL}, 2')
    a(f's_add_u32 s4, s4, s{S_NTL}')
    a(f's_mul_i32 s5, s4, {4*PS}')
    a(f's_add_u32 s5, s5, {WS_PART}')
    srd_off(a, 12, 36, 37, 's5', 4*PS)
    a(f'v_lshlrev_b32 v{TT}, 4, v{VL3}')
    a(f's_mul_i32 s5, s{S_WAVE}, 5120')
    a(f's_mul_i32 s6, s{S_SPL}, {PS}')
    a('s_add_u32 s6, s6, s5')
    a('s_add_u32 s5, s6, 4096')
    for j in range(5):
        for i in range(4): a(f'v_cvt_pk_bf16_f32 v{AF+j*4+i}, v{ACC3+j*8+2*i}, v{ACC3+j*8+2*i+1}')
        a(f'buffer_store_dwordx4 v[{AF+j*4}:{AF+j*4+3}], v{TT}, s[12:15], {"s6" if j < 4 else "s5"} offen offset:{(j%4)*1024} sc1')
    srd_off(a, 16, 36, 37, WS_CNT, 64*256)
    a('s_lshl_b32 s7, s4, 8')
    a(f'v_mov_b32 v{TT+3}, 0')
    a(f'v_mov_b32 v{TT+4}, 1')
    a('s_waitcnt vmcnt(0)')
    a('s_barrier')
    a(f's_cmp_eq_u32 s{S_WAVE}, 0')
    a('s_cbranch_scc0 K3_NOAT')
    a('s_mov_b64 exec, 1')
    a(f'buffer_atomic_add v{TT+4}, v{TT+3}, s[16:19], s7 offen sc0 sc1')
    a(f's_lshl_b32 s50, 1, s{S_SPL}')
    a(f's_mov_b32 s48, {int(os.environ.get("POLLS", 200))}')
    a('s_waitcnt vmcnt(0)')
    a(f'v_readfirstlane_b32 s5, v{TT+4}')
    a('s_and_b32 s6, s5, 7')
    a('s_cmp_eq_u32 s6, 3')
    a('s_cbranch_scc0 K3_POLL')
    a('s_lshr_b32 s5, s5, 8')
    a('s_or_b32 s50, s50, s5')
    a('s_branch K3_PUB')
    a.label('K3_POLL')
    a('s_cmp_eq_u32 s48, 0')
    a('s_cbranch_scc1 K3_GIVEUP')
    a('s_sub_u32 s48, s48, 1')
    a('s_sleep 2')
    a(f'buffer_load_dword v{TT+4}, v{TT+3}, s[16:19], s7 offen sc0 sc1')
    a('s_waitcnt vmcnt(0)')
    a(f'v_readfirstlane_b32 s5, v{TT+4}')
    a('s_and_b32 s6, s5, 7')
    a('s_cmp_eq_u32 s6, 4')
    a('s_cbranch_scc0 K3_POLL')
    a('s_branch K3_PUB')
    a.label('K3_GIVEUP')
    a('s_lshl_b32 s5, s50, 8')
    a(f'v_mov_b32 v{TT+4}, s5')
    a(f'buffer_atomic_or v{TT+4}, v{TT+3}, s[16:19], s7 offen sc0 sc1')
    a('s_waitcnt vmcnt(0)')
    a(f'v_readfirstlane_b32 s5, v{TT+4}')
    a('s_and_b32 s6, s5, 7')
    a('s_cmp_eq_u32 s6, 4')
    a('s_cselect_b32 s50, s50, 0')
    a.label('K3_PUB')
    a(f'v_mov_b32 v{TT+4}, s50')
    a(f'ds_write_b32 v{TT+3}, v{TT+4}')
    a('s_waitcnt lgkmcnt(0)')
    a('s_mov_b64 exec, -1')
    a.label('K3_NOAT')
    srd(a, 16, 44, 45, 2048*1280)
    srd(a, 52, 42, 43, 2048*1280)
    a(f'v_and_b32 v{TT+5}, 15, v{VL3}')
    a(f'v_mul_u32_u24 v{TT+5}, 1280, v{TT+5}')
    a(f'v_lshrrev_b32 v{TT+6}, 4, v{VL3}')
    a(f'v_lshl_add_u32 v{TT+5}, v{TT+6}, 3, v{TT+5}')
    a(f'v_add_u32 v{TT+6}, {16*1280}, v{TT+5}')
    a('s_barrier')
    a(f'ds_read_b32 v{TT+4}, v{TT+3}')
    a('s_waitcnt lgkmcnt(0)')
    a(f'v_readfirstlane_b32 s50, v{TT+4}')
    stamp(a)
    a.label('K3_QL')
    a('s_cmp_eq_u32 s50, 0')
    a('s_cbranch_scc1 K3_FIN')
    a('s_ff1_i32_b32 s51, s50')
    a('s_bitset0_b32 s50, s51')
    a(f's_mov_b32 s65, s{S_WAVE}')
    a.label('K3_PL')
    a('s_mul_i32 s5, s51, 10')
    a('s_add_u32 s5, s5, s65')
    a('s_lshl_b32 s5, s5, 10')
    for o in range(4):
        a(f'buffer_load_dwordx4 v[{PB+o*4}:{PB+o*4+3}], v{TT}, s[12:15], s5 offen sc1')
        if o < 3: a(f's_add_u32 s5, s5, {PS}')
    a('s_cmp_ge_u32 s65, 5')
    a('s_cselect_b32 s6, 1, 0')
    a('s_cselect_b32 s7, 5, 0')
    a('s_sub_u32 s7, s65, s7')
    a('s_lshl_b32 s5, s51, 1')
    a('s_add_u32 s6, s6, s5')
    a(f's_lshl_b32 s4, s{S_MTL}, 2')
    a('s_and_b32 s5, s6, 3')
    a('s_add_u32 s4, s4, s5')
    a(f's_mul_i32 s4, s4, {32*1280}')
    a(f's_mul_i32 s5, s{S_NTL}, 320')
    a('s_add_u32 s4, s4, s5')
    a('s_lshr_b32 s5, s6, 2')
    a('s_mul_i32 s5, s5, 160')
    a('s_add_u32 s4, s4, s5')
    a('s_lshl_b32 s5, s7, 5')
    a('s_add_u32 s4, s4, s5')
    for mt in range(2):
        a(f'buffer_load_dwordx2 v[{PB+16+2*mt}:{PB+17+2*mt}], v{TT+5+mt}, s[16:19], s4 offen')
    a('s_waitcnt vmcnt(0)')
    for i in range(4):
        a(f'v_lshlrev_b32 v{2*i}, 16, v{PB+16+i}')
        a(f'v_and_b32 v{2*i+1}, 0xffff0000, v{PB+16+i}')
        for o in range(4):
            a(f'v_lshlrev_b32 v8, 16, v{PB+o*4+i}')
            a(f'v_and_b32 v9, 0xffff0000, v{PB+o*4+i}')
            a(f'v_add_f32 v{2*i}, v{2*i}, v8')
            a(f'v_add_f32 v{2*i+1}, v{2*i+1}, v9')
        a(f'v_cvt_pk_bf16_f32 v{10+i}, v{2*i}, v{2*i+1}')
    for mt in range(2):
        a(f'buffer_store_dwordx2 v[{10+2*mt}:{11+2*mt}], v{TT+5+mt}, s[52:55], s4 offen')
    a('s_add_u32 s65, s65, 8')
    a('s_cmp_lt_u32 s65, 10')
    a('s_cbranch_scc1 K3_PL')
    a('s_branch K3_QL')
    a.label('K3_FIN')
    stamp_flush(a)
    a.label('K3_DONE')
    a('s_endpgm')

HDR = open('parallel_sum__compressed_kv_cla__glu_gated_reglu__prompt.s.ref').read().split('; Override')[0]

def desc(name, lds=0):
    return f""".p2align 6
.amdhsa_kernel {name}
  .amdhsa_next_free_vgpr 256
  .amdhsa_next_free_sgpr 96
  .amdhsa_accum_offset 256
  .amdhsa_group_segment_fixed_size 0
  .amdhsa_kernarg_size 104
  .amdhsa_user_sgpr_count 2
  .amdhsa_user_sgpr_kernarg_segment_ptr 1
  .amdhsa_system_sgpr_workgroup_id_x 1
.end_amdhsa_kernel
"""

def main(out):
    a = Asm()
    k1(a); k2(a); k3(a)
    for p in check_hazards(a.lines): print(p)
    txt = HDR
    txt += '; @launch kernel=k1_kernel grid=(256,1,1) block=(512,1,1) lds=131072\n'
    txt += '; @launch kernel=k2_kernel grid=(256,1,1) block=(512,1,1) lds=163840\n'
    txt += '; @launch kernel=k3_kernel grid=(256,1,1) block=(512,1,1) lds=147456\n'
    txt += '.amdgcn_target "amdgcn-amd-amdhsa--gfx950"\n.text\n' + a.text()
    txt += '.section .rodata,"a"\n' + desc('k1_kernel') + desc('k2_kernel') + desc('k3_kernel')
    open(out, 'w').write(txt)

if __name__ == '__main__':
    import sys
    main(sys.argv[1] if len(sys.argv) > 1 else 'parallel_sum__compressed_kv_cla__glu_gated_reglu__prompt.s')
```
